```python
import torch

def _softmax(x, axis=-1):
    return torch.softmax(x, dim=axis)
def _gelu(x):
    return torch.nn.functional.gelu(x, approximate="tanh")
def _silu(x):
    return torch.nn.functional.silu(x)
def _sigmoid(x):
    return torch.sigmoid(x)
def _layernorm(x, axis=-1, eps=1e-5):
    m = x.mean(dim=axis, keepdim=True)
    v = x.var(dim=axis, keepdim=True, unbiased=False)
    return (x - m) / torch.sqrt(v + eps)
def _scatter_add(tgt, idx, src, axis=0):
    return tgt.clone().index_add_(axis, idx, src)
def _segment_sum(src, seg, n):
    out = torch.zeros((n,) + src.shape[1:], dtype=src.dtype)
    return out.index_add_(0, seg, src)
def _pad(x, pw):
    flat = tuple(v for pair in reversed(pw) for v in pair)
    return torch.nn.functional.pad(x, flat)

kernel_name = 'gated_mix__grouped_kv_mqa__geglu_ffn__prompt'

def setup_inputs():

    _w = (lambda a: (lambda t: t.to(torch.bfloat16) if t.is_floating_point() else t)(torch.as_tensor(a)))
    def _A_setup():
        B, S, D, H = 1, 2048, 512, 32
        Dh = D // H
        return {
            "x": _w((lambda *s: torch.randn(*s, dtype=torch.bfloat16) * 0.05)(B, S, D)),
            "wq": _w((lambda *s: torch.randn(*s, dtype=torch.bfloat16) * 0.8)(D, H * Dh)),
            "wk": _w((lambda *s: torch.randn(*s, dtype=torch.bfloat16) * 0.8)(D, Dh)),
            "wv": _w((lambda *s: torch.randn(*s, dtype=torch.bfloat16) * 0.05)(D, Dh)),
            "wo": _w((lambda *s: torch.randn(*s, dtype=torch.bfloat16) * 0.05)(H * Dh, D)),
        }
    _A_in = _A_setup()

    def _B_setup():
        B, S, D, F = 1, 2048, 512, 1376
        return {
            "x": _w((lambda *s: torch.randn(*s, dtype=torch.bfloat16) * 0.05)(B, S, D)),
            "w_gate": _w((lambda *s: torch.randn(*s, dtype=torch.bfloat16) * 0.05)(D, F)),
            "w_up": _w((lambda *s: torch.randn(*s, dtype=torch.bfloat16) * 0.05)(D, F)),
            "w_down": _w((lambda *s: torch.randn(*s, dtype=torch.bfloat16) * 0.05)(F, D)),
        }
    _B_in = _B_setup()

    return {
        "A_x": _A_in["x"],
        "A_wq": _A_in["wq"],
        "A_wk": _A_in["wk"],
        "A_wv": _A_in["wv"],
        "A_wo": _A_in["wo"],
        "B_x": _B_in["x"],
        "B_w_gate": _B_in["w_gate"],
        "B_w_up": _B_in["w_up"],
        "B_w_down": _B_in["w_down"],
        "gate_w": _w((lambda *s: torch.randn(*s, dtype=torch.bfloat16) * 0.05)(512) * 16.0),
    }

def reference(A_x, A_wq, A_wk, A_wv, A_wo, B_x, B_w_gate, B_w_up, B_w_down, gate_w):
    def _A_ref(x, wq, wk, wv, wo):
        B, S, D = x.shape
        H = 32
        Dh = D // H
        q = (lambda x, *d: x.permute(*d))((x @ wq).reshape(B, S, H, Dh), 0, 2, 1, 3)
        k = x @ wk
        v = x @ wv
        scores = torch.einsum("bhqd,bkd->bhqk", q, k) * (Dh ** -0.5)
        p = _softmax(scores, axis=-1)
        o = torch.einsum("bhqk,bkd->bhqd", p, v)
        return (lambda x, *d: x.permute(*d))(o, 0, 2, 1, 3).reshape(B, S, H * Dh) @ wo

    def _B_ref(x, w_gate, w_up, w_down):
        return (_gelu(x @ w_gate) * (x @ w_up)) @ w_down

    x = A_x
    g = _sigmoid((x * gate_w).sum(-1, keepdims=True))
    a = _A_ref(x, A_wq, A_wk, A_wv, A_wo)
    b = _B_ref(x, B_w_gate, B_w_up, B_w_down)
    return g * a + (1 - g) * b
```

```python
class Asm:
    def __init__(self):
        self.L = []
        self.nlabel = 0
    def __call__(self, s):
        for line in s.split("\n"):
            line = line.rstrip()
            if line.strip():
                if line.strip().endswith(":") or line.startswith("."):
                    self.L.append(line.strip())
                else:
                    self.L.append("    " + line.strip())
    def c(self, s):
        self.L.append("    ; " + s)
    def label(self, base="L"):
        self.nlabel += 1
        return f"{base}_{self.nlabel}"
    def text(self):
        return "\n".join(self.L) + "\n"

def vr(b, n=1):
    return f"v{b}" if n == 1 else f"v[{b}:{b+n-1}]"
def sr(b, n=1):
    return f"s{b}" if n == 1 else f"s[{b}:{b+n-1}]"

class Counter:
    def __init__(self, a, name, maxv):
        self.a, self.name, self.maxv = a, name, maxv
        self.q = []
    def issue(self, tag):
        self.q.append(tag)
    def wait(self, tag):
        idx = [i for i, t in enumerate(self.q) if t == tag]
        if not idx:
            return
        n = len(self.q) - 1 - idx[-1]
        assert n <= self.maxv, (self.name, n)
        self.a(f"s_waitcnt {self.name}({n})")
        self.q = self.q[idx[-1] + 1:]
    def wait_all(self):
        self.a(f"s_waitcnt {self.name}(0)")
        self.q = []

def srd(a, d, lo, hi, size, add=0):
    if add == 0:
        a(f"s_mov_b32 s{d}, s{lo}\ns_mov_b32 s{d+1}, s{hi}")
    else:
        a(f"s_add_u32 s{d}, s{lo}, {add}\ns_addc_u32 s{d+1}, s{hi}, 0")
    a(f"s_mov_b32 s{d+2}, {size}\ns_mov_b32 s{d+3}, 0x20000")

def kdesc(name, vgpr, sgpr=102, accum=None):
    accum = accum or ((vgpr + 3) // 4 * 4)
    return f""".amdhsa_kernel {name}
  .amdhsa_next_free_vgpr {vgpr}
  .amdhsa_next_free_sgpr {sgpr}
  .amdhsa_accum_offset {accum}
  .amdhsa_group_segment_fixed_size 0
  .amdhsa_kernarg_size 104
  .amdhsa_user_sgpr_count 2
  .amdhsa_user_sgpr_kernarg_segment_ptr 1
  .amdhsa_system_sgpr_workgroup_id_x 1
.end_amdhsa_kernel
"""
```

```python
import math
A_X, A_WQ, A_WK, A_WV, A_WO, A_BX, A_WG, A_WU, A_WD, A_GW, A_OUT, A_DBG, A_WS = [8*i for i in range(13)]
QF, QF_SZ = 0x000000, 0x200000
OF, OF_SZ = 0x200000, 0x200000
KF, KF_SZ = 0x400000, 0x10000
VF, VF_SZ = 0x410000, 0x10000
GB, GB_SZ = 0x420000, 0x2000
KN, KN_SZ = 0x422000, 0x200
QN, QN_SZ = 0x423000, 0x1000
HF, HF_SZ = 0x500000, 86*0x10000
import struct
def f2u(x):
    return struct.unpack("<I", struct.pack("<f", x))[0]
LOG2E = math.log2(math.e)
C_K = 0.25 * LOG2E
T_BOUND = 48.0

def prologue(a, sw=3, srb=4, scg=5, vlane=1):
    a(f"""
    s_cmp_ge_u32 s2, 256
    s_cbranch_scc1 {a.endlabel}
    v_lshrrev_b32 v2, 6, v0
    v_and_b32 v{vlane}, 63, v0
    v_readfirstlane_b32 s{sw}, v2
    s_and_b32 s{srb}, s2, 7
    s_lshr_b32 s{scg}, s2, 3
    s_and_b32 s{scg}, s{scg}, 3
    s_lshl_b32 s{scg}, s{scg}, 3
    s_add_u32 s{srb}, s{srb}, s{scg}
    s_lshr_b32 s{scg}, s2, 5
    """)
```

```python
from asmlib import *
from common import *

X_L, WQ_L, WKV_L, GW_L = 0, 65536, 131072, 147456
K1_LDS = 148480

def gen_k1(name):
    a = Asm()
    a.endlabel = "K1_end"
    a(f".p2align 8\n.type {name},@function\n{name}:")
    a(f"""
    s_load_dwordx4 s[28:31], s[0:1], {A_X}
    s_load_dwordx4 s[32:35], s[0:1], {A_WK}
    s_load_dwordx2 s[36:37], s[0:1], {A_GW}
    s_load_dwordx2 s[38:39], s[0:1], {A_WS}
    """)
    prologue(a)
    a(f"""
    v_lshrrev_b32 v2, 3, v1
    v_and_b32 v3, 7, v1
    s_lshl_b32 s6, s3, 3
    v_add_u32 v5, s6, v2
    v_bfe_u32 v6, v5, 1, 3
    v_xor_b32 v6, v6, v3
    v_lshlrev_b32 v6, 4, v6
    v_lshl_add_u32 v4, v5, 10, v6
    """)
    a(f"""
    v_bfe_u32 v6, v2, 1, 1
    v_lshlrev_b32 v6, 2, v6
    v_xor_b32 v6, v6, v3
    v_lshlrev_b32 v6, 4, v6
    s_lshl_b32 s6, s3, 4
    v_add_u32 v5, s6, v2
    v_lshl_add_u32 v7, v5, 10, v6
    s_lshl_b32 s6, s5, 7
    v_add_u32 v7, s6, v7
    v_lshlrev_b32 v8, 4, v1
    s_lshl_b32 s7, s3, 10
    s_lshl_b32 s40, s3, 11
    v_add_u32 v9, s40, v8
    s_waitcnt lgkmcnt(0)
    """)
    a("s_lshl_b32 s6, s4, 16")
    srd(a, 8, 28, 29, 65536, add="s6")
    srd(a, 12, 30, 31, 524288)
    a("s_cmp_ge_u32 s5, 4\ns_cselect_b32 s32, s34, s32\ns_cselect_b32 s33, s35, s33")
    srd(a, 16, 32, 33, 16384)
    srd(a, 20, 36, 37, 1024)
    vm = Counter(a, "vmcnt", 63)
    a(f"s_mov_b32 m0, {GW_L}\ns_nop 0\nbuffer_load_dwordx4 v8, s[20:23], 0 offen lds"); vm.issue("c0")
    for j in range(2):
        a(f"s_add_u32 m0, s40, {WKV_L}\ns_nop 0\nbuffer_load_dwordx4 v9, s[16:19], 0 offen offset:{1024*j} lds"); vm.issue("c0")
    for c in range(4):
        for kc in (2*c, 2*c+1):
            a(f"s_add_u32 m0, s7, {X_L + kc*8192 - kc*128}\ns_nop 0\nbuffer_load_dwordx4 v4, s[8:11], 0 offen offset:{kc*128} lds"); vm.issue(f"c{c}")
        for j in range(2):
            a(f"s_add_u32 m0, s40, {WQ_L + (128*c + 8*j)*128}\ns_mov_b32 s41, {(128*c + 8*j)*1024}\nbuffer_load_dwordx4 v7, s[12:15], s41 offen lds"); vm.issue(f"c{c}")
    a("s_cmp_eq_u32 s3, 4\ns_cbranch_scc1 K1_kv\ns_cmp_gt_u32 s3, 4\ns_cbranch_scc1 K1_idle")
    a(f"""
    v_and_b32 v2, 31, v1
    v_lshrrev_b32 v3, 5, v1
    v_bfe_u32 v5, v2, 1, 3
    s_and_b32 s6, s3, 1
    s_lshl_b32 s6, s6, 12
    v_lshl_add_u32 v2, v2, 7, s6
    """)
    for j in range(4):
        a(f"v_or_b32 v6, {2*j}, v3\nv_xor_b32 v6, v6, v5\nv_lshl_add_u32 v{10+j}, v6, 4, v2")
    a(f"""
    v_bfe_u32 v2, v1, 2, 2
    v_lshrrev_b32 v3, 5, v1
    v_lshl_add_u32 v3, v3, 3, v2
    v_lshlrev_b32 v3, 7, v3
    v_bfe_u32 v2, v1, 3, 1
    s_lshr_b32 s6, s3, 1
    v_xor_b32 v2, s6, v2
    v_lshl_add_u32 v3, v2, 6, v3
    v_bfe_u32 v2, v1, 4, 1
    v_lshl_add_u32 v3, v2, 5, v3
    v_and_b32 v2, 3, v1
    v_lshl_add_u32 v3, v2, 3, v3
    v_add_u32 v14, {WQ_L}, v3
    """)
    ACC = 16
    FR = 32
    vmq = Counter(a, "vmcnt", 63); vmq.q = list(vm.q)
    lg = Counter(a, "lgkmcnt", 15)
    def rd(ks):
        f = FR + 8*(ks % 4)
        a(f"ds_read_b128 {vr(f,4)}, v{10 + (ks&3)} offset:{(ks>>2)*8192}"); lg.issue(ks)
        a(f"ds_read_b64_tr_b16 {vr(f+4,2)}, v14 offset:{2048*ks}"); lg.issue(ks)
        a(f"ds_read_b64_tr_b16 {vr(f+6,2)}, v14 offset:{2048*ks+512}"); lg.issue(ks)
    for c in range(4):
        vmq.wait(f"c{c}")
        a("s_barrier")
        for i in range(3):
            rd(8*c + i)
        for i in range(8):
            ks = 8*c + i
            if i + 3 < 8:
                rd(ks + 3)
            lg.wait(ks)
            f = FR + 8*(ks % 4)
            cin = "0" if ks == 0 else vr(ACC, 16)
            a(f"v_mfma_f32_32x32x16_bf16 {vr(ACC,16)}, {vr(f+4,4)}, {vr(f,4)}, {cin}")
    a(f"""
    s_lshl_b32 s6, s4, 1
    s_and_b32 s41, s3, 1
    s_add_u32 s6, s6, s41
    s_lshl_b32 s6, s6, 5
    s_lshl_b32 s41, s5, 2
    s_add_u32 s6, s6, s41
    s_and_b32 s41, s3, 2
    s_add_u32 s6, s6, s41
    s_lshl_b32 s6, s6, 10
    """)
    srd(a, 24, 38, 39, QF_SZ)
    a("s_nop 7")
    for i in range(8):
        a(f"v_cvt_pk_bf16_f32 v{FR+i}, v{ACC+2*i}, v{ACC+2*i+1}")
    a(f"buffer_store_dwordx4 {vr(FR,4)}, v8, s[24:27], s6 offen")
    a(f"buffer_store_dwordx4 {vr(FR+4,4)}, v8, s[24:27], s6 offen offset:1024")
    a(f"v_mul_f32 v2, v{ACC}, v{ACC}\nv_mul_f32 v3, v{ACC+8}, v{ACC+8}")
    for i in range(1, 8):
        a(f"v_fmac_f32 v2, v{ACC+i}, v{ACC+i}\nv_fmac_f32 v3, v{ACC+8+i}, v{ACC+8+i}")
    a(f"""
    v_mov_b32 v5, v2
    v_mov_b32 v6, v3
    s_nop 1
    v_permlane32_swap_b32 v2, v5
    v_permlane32_swap_b32 v3, v6
    s_nop 1
    v_add_f32 v2, v2, v5
    v_add_f32 v3, v3, v6
    v_max_u32 v2, v2, v3
    v_mov_b32 v5, v2
    s_nop 1
    v_permlane16_swap_b32 v2, v5
    s_nop 1
    v_max_u32 v2, v2, v5
    """)
    for sh in (8, 4, 2, 1):
        a(f"s_nop 1\nv_max_u32_dpp v2, v2, v2 row_ror:{sh} row_mask:0xf bank_mask:0xf")
    srd(a, 24, 38, 39, QN_SZ, add=QN)
    a(f"""
    s_lshl_b32 s6, s2, 2
    s_add_u32 s6, s6, s3
    s_lshl_b32 s6, s6, 2
    v_mov_b32 v3, 0
    s_mov_b64 exec, 1
    buffer_store_dword v2, v3, s[24:27], s6 offen
    s_endpgm
    """)
    a("K1_idle:")
    vmi = Counter(a, "vmcnt", 63); vmi.q = list(vm.q)
    for c in range(4):
        vmi.wait(f"c{c}")
        a("s_barrier")
    a("s_endpgm")
    a("K1_kv:")
    a(f"""
    s_and_b32 s42, s5, 3
    s_lshl_b32 s6, s42, 4
    v_and_b32 v2, 15, v1
    v_add_u32 v15, s6, v2
    v_lshrrev_b32 v3, 4, v1
    v_bfe_u32 v5, v15, 1, 3
    v_xor_b32 v5, v5, v3
    v_lshlrev_b32 v5, 4, v5
    v_lshl_add_u32 v10, v15, 7, v5
    v_xor_b32 v11, 64, v10
    v_bfe_u32 v5, v1, 2, 2
    v_lshl_add_u32 v5, v3, 3, v5
    v_lshlrev_b32 v5, 5, v5
    v_and_b32 v6, 3, v1
    v_lshl_add_u32 v5, v6, 3, v5
    v_add_u32 v12, {WKV_L}, v5
    v_lshlrev_b32 v13, 4, v3
    v_add_u32 v13, {GW_L}, v13
    s_cmp_ge_u32 s5, 4
    s_cbranch_scc1 K1_v
    """)
    for isv in (0, 1):
        if isv:
            a("K1_v:")
        vmk = Counter(a, "vmcnt", 63); vmk.q = list(vm.q)
        lg = Counter(a, "lgkmcnt", 15)
        FRK = 32
        def rdk(s):
            f = FRK + 12*(s % 4)
            a(f"ds_read_b128 {vr(f,4)}, v{10 + (s&1)} offset:{(s>>1)*8192}"); lg.issue(s)
            a(f"ds_read_b64_tr_b16 {vr(f+4,2)}, v12 offset:{1024*s}"); lg.issue(s)
            a(f"ds_read_b64_tr_b16 {vr(f+6,2)}, v12 offset:{1024*s+128}"); lg.issue(s)
            if not isv:
                a(f"ds_read_b128 {vr(f+8,4)}, v13 offset:{64*s}"); lg.issue(s)
        for c in range(4):
            vmk.wait(f"c{c}")
            a("s_barrier")
            for i in range(3):
                rdk(4*c + i)
            for i in range(4):
                s = 4*c + i
                lg.wait(s)
                if i == 0:
                    rdk(s + 3)
                f = FRK + 12*(s % 4)
                c0 = "0" if s == 0 else vr(16, 4)
                c1 = "0" if s == 0 else vr(20, 4)
                if isv:
                    a(f"v_mfma_f32_16x16x32_bf16 {vr(16,4)}, {vr(f,4)}, {vr(f+4,4)}, {c0}")
                else:
                    a(f"v_mfma_f32_16x16x32_bf16 {vr(16,4)}, {vr(f+4,4)}, {vr(f,4)}, {c0}")
                    a(f"v_mfma_f32_16x16x32_bf16 {vr(20,4)}, {vr(f+8,4)}, {vr(f,4)}, {c1}")
        if isv:
            a(f"""
            s_lshl_b32 s6, s4, 2
            s_add_u32 s6, s6, s42
            s_lshl_b32 s6, s6, 9
            v_lshrrev_b32 v5, 5, v1
            v_lshlrev_b32 v5, 8, v5
            v_lshl_add_u32 v5, v2, 4, v5
            v_and_b32 v6, 1, v3
            v_lshl_add_u32 v5, v6, 3, v5
            """)
            srd(a, 24, 38, 39, VF_SZ, add=VF)
            a(f"""
            s_nop 3
            v_cvt_pk_bf16_f32 v24, v16, v17
            v_cvt_pk_bf16_f32 v25, v18, v19
            buffer_store_dwordx2 v[24:25], v5, s[24:27], s6 offen
            s_endpgm
            """)
        else:
            a(f"""
            s_lshl_b32 s6, s4, 11
            v_lshrrev_b32 v5, 5, v15
            v_lshlrev_b32 v5, 10, v5
            v_and_b32 v6, 31, v15
            v_lshl_add_u32 v5, v6, 4, v5
            v_and_b32 v6, 1, v3
            v_lshl_add_u32 v5, v6, 9, v5
            v_lshrrev_b32 v6, 1, v3
            v_lshl_add_u32 v5, v6, 3, v5
            s_mov_b32 s43, {f2u(C_K):#x}
            """)
            srd(a, 24, 38, 39, KF_SZ, add=KF)
            a(f"""
            s_nop 3
            v_mul_f32 v16, s43, v16
            v_mul_f32 v17, s43, v17
            v_mul_f32 v18, s43, v18
            v_mul_f32 v19, s43, v19
            v_cvt_pk_bf16_f32 v24, v16, v17
            v_cvt_pk_bf16_f32 v25, v18, v19
            buffer_store_dwordx2 v[24:25], v5, s[24:27], s6 offen
            v_mul_f32 v20, {f2u(-LOG2E):#x}, v20
            v_exp_f32 v20, v20
            v_mul_f32 v6, v16, v16
            v_add_f32 v20, 1.0, v20
            v_fmac_f32 v6, v17, v17
            v_rcp_f32 v20, v20
            v_fmac_f32 v6, v18, v18
            v_fmac_f32 v6, v19, v19
            v_mov_b32 v7, v6
            s_nop 1
            v_permlane32_swap_b32 v6, v7
            s_nop 1
            v_add_f32 v6, v6, v7
            v_mov_b32 v7, v6
            s_nop 1
            v_permlane16_swap_b32 v6, v7
            s_nop 1
            v_add_f32 v6, v6, v7
            """)
            for sh in (8, 4, 2, 1):
                a(f"s_nop 1\nv_max_u32_dpp v6, v6, v6 row_ror:{sh} row_mask:0xf bank_mask:0xf")
            srd(a, 24, 38, 39, GB_SZ, add=GB)
            a(f"""
            s_lshl_b32 s6, s4, 8
            v_lshlrev_b32 v5, 2, v15
            s_mov_b64 exec, 0xffff
            buffer_store_dword v20, v5, s[24:27], s6 offen
            s_mov_b64 exec, 1
            """)
            srd(a, 24, 38, 39, KN_SZ, add=KN)
            a(f"""
            s_lshl_b32 s6, s4, 2
            s_add_u32 s6, s6, s42
            s_lshl_b32 s6, s6, 2
            v_mov_b32 v5, 0
            buffer_store_dword v6, v5, s[24:27], s6 offen
            s_endpgm
            """)
    a("K1_end:\ns_endpgm")
    return a.text(), kdesc(name, 96)
```

```python
from asmlib import *
from common import *

X_L = 0
RING_L = 65536
STG = 22656
UPOFF = 11264 + 128
RED_L = RING_L + 3*STG
SYNC_L = RED_L + 4*4608
K2_LDS = SYNC_L + 64

POS = (0, 3, 6)

def gen_att(a):
    Q, O, S, KV = 8, 24, 88, 152
    a(f"""
    v_lshlrev_b32 v4, 4, v1
    v_lshrrev_b32 v2, 5, v1
    v_and_b32 v3, 15, v1
    v_lshlrev_b32 v3, 4, v3
    v_lshl_add_u32 v5, v2, 8, v3
    v_mov_b32 v6, 0xdddd
    v_lshlrev_b32 v7, 3, v1
    v_and_b32 v3, 31, v1
    v_lshlrev_b32 v3, 2, v3
    s_and_b32 s6, s3, 1
    s_lshl_b32 s7, s4, 1
    s_add_u32 s7, s7, s6
    s_lshl_b32 s40, s7, 7
    s_lshl_b32 s7, s7, 5
    s_lshl_b32 s41, s5, 2
    s_add_u32 s7, s7, s41
    s_lshl_b32 s7, s7, 10
    s_lshr_b32 s42, s3, 1
    s_lshl_b32 s43, s42, 15
    s_mov_b32 s44, 0xffff
    s_mov_b32 s45, 0xffff
    s_lshl_b32 s46, s2, 4
    s_add_u32 s46, s46, {QN}
    s_add_u32 s46, s38, s46
    s_addc_u32 s47, s39, 0
    s_load_dwordx4 s[48:51], s[46:47], 0
    """)
    for b in range(4):
        for i in range(4, 12):
            a(f"v_mov_b32 v{KV+12*b+i}, 0x3f803f80")
    srd(a, 8, 38, 39, QF_SZ)
    srd(a, 12, 38, 39, KF_SZ, add=KF)
    srd(a, 16, 38, 39, VF_SZ, add=VF)
    srd(a, 20, 38, 39, KN_SZ, add=KN)
    srd(a, 24, 38, 39, GB_SZ, add=GB)
    def loadkv(b):
        a(f"""
        buffer_load_dwordx4 {vr(KV+12*b,4)}, v4, s[12:15], s43 offen
        s_mov_b64 exec, s[44:45]
        buffer_load_dwordx4 {vr(KV+12*b+4,4)}, v5, s[16:19], s43 offen
        buffer_load_dwordx4 {vr(KV+12*b+8,4)}, v5, s[16:19], s43 offen offset:512
        s_mov_b64 exec, -1
        s_add_u32 s43, s43, 1024
        """)
    a(f"buffer_load_dwordx2 {vr(S,2)}, v7, s[20:23], 0 offen")
    a(f"buffer_load_dword v7, v3, s[24:27], s40 offen")
    for t in range(4):
        a(f"buffer_load_dwordx4 {vr(Q+4*t,4)}, v4, s[8:11], s7 offen offset:{1024*t}")
    for b in range(3):
        loadkv(b)
    for i in range(64):
        a(f"v_mov_b32 v{O+i}, 0")
    a(f"""
    s_waitcnt vmcnt(14)
    v_max_u32 v2, v{S}, v{S+1}
    v_mov_b32 v3, v2
    s_nop 1
    v_permlane32_swap_b32 v2, v3
    s_nop 1
    v_max_u32 v2, v2, v3
    v_mov_b32 v3, v2
    s_nop 1
    v_permlane16_swap_b32 v2, v3
    s_nop 1
    v_max_u32 v2, v2, v3
    """)
    for sh in (8, 4, 2, 1):
        a(f"s_nop 1\nv_max_u32_dpp v2, v2, v2 row_ror:{sh} row_mask:0xf bank_mask:0xf")
    a(f"""
    s_waitcnt lgkmcnt(0)
    s_max_u32 s48, s48, s49
    s_max_u32 s50, s50, s51
    s_max_u32 s48, s48, s50
    v_mul_f32 v2, s48, v2
    v_mov_b32 v3, {f2u(T_BOUND*T_BOUND):#x}
    v_cmp_nle_f32 vcc, v2, v3
    s_nop 4
    s_cbranch_vccnz ATT_slow
    """)
    def step(i, pv=True, qk=True, ex=True):
        t = i % 4
        m = {}
        if qk:
            kb = ((i+1)//4) % 4
            s = ""
            if (i+1) % 4 == 0:
                s = "s_waitcnt vmcnt(6)\n"
            m[POS[0]] = s + f"v_mfma_f32_32x32x16_bf16 {vr(S+16*((i+1)%4),16)}, {vr(KV+12*kb,4)}, {vr(Q+4*((i+1)%4),4)}, 0"
        if pv:
            vb = ((i-1)//4) % 4
            tp = (i-1) % 4
            m[POS[1]] = f"v_smfmac_f32_32x32x32_bf16 {vr(O+16*tp,16)}, {vr(KV+12*vb+4,4)}, {vr(S+16*tp,8)}, v6"
            m[POS[2]] = f"v_smfmac_f32_32x32x32_bf16 {vr(O+16*tp,16)}, {vr(KV+12*vb+8,4)}, {vr(S+16*tp+8,8)}, v6"
        for e in range(16):
            if e in m:
                a(m[e])
            if ex:
                a(f"v_exp_f32 v{S+16*t+e}, v{S+16*t+e}")
            if e == 10 and t == 1 and ex:
                loadkv((i//4 + 3) % 4)
    a(f"""
    s_waitcnt vmcnt(6)
    v_mfma_f32_32x32x16_bf16 {vr(S,16)}, {vr(KV,4)}, {vr(Q,4)}, 0
    s_mov_b32 s52, 8
    s_setprio 1
    s_nop 8
    """)
    step(0, pv=False)
    a("s_branch ATT_mid\n.p2align 6\nATT_loop:")
    step(16)
    a("ATT_mid:")
    for i in range(1, 16):
        step(i)
    a("s_sub_u32 s52, s52, 1\ns_cmp_lg_u32 s52, 0\ns_cbranch_scc1 ATT_loop")
    step(16, qk=False, ex=False)
    a("ATT_epi:")
    a(f"""
    s_setprio 0
    s_mul_i32 s6, s3, 4608
    s_add_u32 s6, s6, {RED_L}
    v_add_u32 v2, s6, v4
    v_lshrrev_b32 v3, 2, v4
    v_add_u32 v3, s6, v3
    s_xor_b32 s53, s3, 2
    s_mul_i32 s6, s53, 4608
    s_add_u32 s6, s6, {RED_L}
    v_add_u32 v8, s6, v4
    v_lshrrev_b32 v9, 2, v4
    v_add_u32 v9, s6, v9
    s_lshl_b32 s6, s3, 2
    s_add_u32 s6, s6, {SYNC_L + 16}
    v_mov_b32 v10, s6
    v_xor_b32 v11, 8, v10
    v_mov_b32 v12, 1
    s_lshl_b32 s6, s42, 11
    s_add_u32 s7, s7, s6
    s_cmp_lg_u32 s42, 0
    s_cbranch_scc1 ATT_x1
    """)
    for kh in range(2):
        if kh: a("ATT_x1:")
        send = [2, 3] if kh == 0 else [0, 1]
        keep = [0, 1] if kh == 0 else [2, 3]
        for j, t in enumerate(send):
            a(f"ds_write_b128 v2, {vr(O+16*t,4)} offset:{2304*j}")
            a(f"ds_write_b128 v2, {vr(O+16*t+4,4)} offset:{2304*j+1024}")
            a(f"ds_write_b32 v3, v{O+16*t+8} offset:{2304*j+2048}")
        lp = a.label("ATT_poll")
        a(f"""
        s_waitcnt lgkmcnt(0)
        ds_write_b32 v10, v12
        {lp}:
        ds_read_b32 v13, v11
        s_waitcnt lgkmcnt(0)
        v_readfirstlane_b32 s6, v13
        s_cmp_eq_u32 s6, 0
        s_cbranch_scc1 {lp}
        """)
        R = S
        for j in range(2):
            a(f"ds_read_b128 {vr(R+12*j,4)}, v8 offset:{2304*j}")
            a(f"ds_read_b128 {vr(R+12*j+4,4)}, v8 offset:{2304*j+1024}")
            a(f"ds_read_b32 v{R+12*j+8}, v9 offset:{2304*j+2048}")
        srd(a, 20, 38, 39, OF_SZ, add=OF)
        a("s_waitcnt vmcnt(0) lgkmcnt(0)")
        for j, t in enumerate(keep):
            a(f"v_add_f32 v{R+12*j+8}, v{R+12*j+8}, v{O+16*t+8}")
        for j, t in enumerate(keep):
            a(f"v_rcp_f32 v{R+12*j+8}, v{R+12*j+8}")
        for j, t in enumerate(keep):
            for i in range(8):
                a(f"v_add_f32 v{R+12*j+i}, v{R+12*j+i}, v{O+16*t+i}")
            a(f"v_mul_f32 v{R+12*j+8}, v{R+12*j+8}, v7")
            for i in range(8):
                a(f"v_mul_f32 v{R+12*j+i}, v{R+12*j+i}, v{R+12*j+8}")
            for i in range(4):
                a(f"v_cvt_pk_bf16_f32 v{R+32+4*j+i}, v{R+12*j+2*i}, v{R+12*j+2*i+1}")
            a(f"buffer_store_dwordx4 {vr(R+32+4*j,4)}, v4, s[20:23], s7 offen offset:{1024*j}")
        a("s_endpgm")
    a("ATT_slow:")
    C = S + 16
    for t in range(4):
        l1 = a.label("ATT_s1"); l2 = a.label("ATT_s2")
        a(f"""
        s_waitcnt vmcnt(0)
        s_mov_b32 s43, 0
        v_mov_b32 v2, 0xff800000
        {l1}:
        buffer_load_dwordx4 {vr(KV,4)}, v4, s[12:15], s43 offen
        s_add_u32 s43, s43, 1024
        s_waitcnt vmcnt(0)
        v_mfma_f32_32x32x16_bf16 {vr(S,16)}, {vr(KV,4)}, {vr(Q+4*t,4)}, 0
        s_nop 15
        """)
        for i in range(8):
            a(f"v_max3_f32 v2, v{S+2*i}, v{S+2*i+1}, v2")
        a(f"""
        s_cmp_lt_u32 s43, 65536
        s_cbranch_scc1 {l1}
        v_mov_b32 v3, v2
        s_nop 1
        v_permlane32_swap_b32 v2, v3
        s_nop 1
        v_max_f32 v2, v2, v3
        """)
        for i in range(16):
            a(f"v_sub_f32 v{C+i}, 0, v2")
        a(f"""
        s_lshl_b32 s43, s42, 15
        s_mov_b32 s52, 32
        {l2}:
        """)
        loadkv(0)
        a(f"""
        s_waitcnt vmcnt(0)
        v_mfma_f32_32x32x16_bf16 {vr(S,16)}, {vr(KV,4)}, {vr(Q+4*t,4)}, {vr(C,16)}
        s_nop 15
        """)
        for i in range(16):
            a(f"v_exp_f32 v{S+i}, v{S+i}")
        a(f"""
        s_nop 1
        v_smfmac_f32_32x32x32_bf16 {vr(O+16*t,16)}, {vr(KV+4,4)}, {vr(S,8)}, v6
        v_smfmac_f32_32x32x32_bf16 {vr(O+16*t,16)}, {vr(KV+8,4)}, {vr(S+8,8)}, v6
        s_sub_u32 s52, s52, 1
        s_cmp_lg_u32 s52, 0
        s_cbranch_scc1 {l2}
        """)
    a("s_branch ATT_epi")

def subbar(a, vaddr, vone, vtmp, starget, stmp, inc):
    lp = a.label("SB")
    a(f"""
    s_mov_b64 exec, 1
    ds_add_u32 v{vaddr}, v{vone}
    s_mov_b64 exec, -1
    s_add_u32 s{starget}, s{starget}, {inc}
    {lp}:
    ds_read_b32 v{vtmp}, v{vaddr}
    s_waitcnt lgkmcnt(0)
    v_readfirstlane_b32 s{stmp}, v{vtmp}
    s_cmp_lt_u32 s{stmp}, s{starget}
    s_cbranch_scc1 {lp}
    """)

def gen_g1(a):
    ACC, FA, FB, T = 24, 120, 140, 160
    a(f"""
    s_sub_u32 s3, s3, 4
    v_lshrrev_b32 v2, 3, v1
    v_and_b32 v3, 7, v1
    s_lshl_b32 s6, s3, 3
    v_add_u32 v5, s6, v2
    v_bfe_u32 v6, v5, 1, 3
    v_xor_b32 v6, v6, v3
    v_lshlrev_b32 v6, 4, v6
    v_lshl_add_u32 v4, v5, 10, v6
    s_lshl_b32 s7, s3, 10
    s_mov_b32 s41, 32768
    s_lshl_b32 s6, s4, 16
    """)
    srd(a, 8, 28, 29, 65536, add="s6")
    for kc in range(8):
        for i4 in range(2):
            so = "s41" if i4 else "0"
            a(f"s_add_u32 m0, s7, {X_L + kc*8192 + i4*4096 - kc*128}\ns_nop 0\nbuffer_load_dwordx4 v4, s[8:11], {so} offen offset:{kc*128} lds")
    WSZ = 512*2752
    srd(a, 12, 32, 33, WSZ)
    srd(a, 16, 34, 35, WSZ)
    a("s_cmp_eq_u32 s3, 3\ns_cselect_b32 s42, s34, s32\ns_cselect_b32 s43, s35, s33")
    srd(a, 20, 42, 43, WSZ)
    a("s_cmp_ge_u32 s3, 2\ns_cselect_b32 s42, s32, s34\ns_cselect_b32 s43, s33, s35")
    srd(a, 24, 42, 43, WSZ)
    SRDS = [12, 12, 20, 16, 16, 24]
    a("s_mul_i32 s44, s5, 352\ns_movk_i32 s45, 2979\ns_movk_i32 s46, 2752")
    for m in range(6):
        a(f"s_add_u32 s6, s3, {4*m}")
        if m == 5:
            a("s_cmp_ge_u32 s3, 2\ns_cselect_b32 s6, s3, s6")
        a(f"""
        s_cmp_ge_u32 s6, 11
        s_cselect_b32 s42, 11, 0
        s_cselect_b32 s43, {UPOFF}, 0
        s_sub_u32 s6, s6, s42
        s_lshl_b32 s42, s6, 10
        s_add_u32 s43, s43, s42
        s_add_u32 s{56+m}, s43, {RING_L}
        s_lshl_b32 s6, s6, 6
        v_add_u32 v2, s6, v1
        v_mul_lo_u32 v3, v2, s45
        v_lshrrev_b32 v3, 16, v3
        v_mul_u32_u24 v5, 22, v3
        v_sub_u32 v2, v2, v5
        v_mul_lo_u32 v3, v3, s46
        v_lshl_add_u32 v2, v2, 4, v3
        v_add_u32 v{8+m}, s44, v2
        """)
    a("s_mov_b32 s47, 0\ns_mov_b32 s48, 0\ns_mov_b32 s49, 0\ns_mov_b32 s50, 0")
    def dma_stage():
        for m in range(6):
            a(f"s_add_u32 m0, s{56+m}, s48\ns_nop 0\nbuffer_load_dwordx4 v{8+m}, {sr(SRDS[m],4)}, s47 offen lds")
        a(f"""
        s_add_u32 s47, s47, {32*2752}
        s_add_u32 s48, s48, {STG}
        s_cmp_eq_u32 s48, {3*STG}
        s_cselect_b32 s48, 0, s48
        """)
    dma_stage(); dma_stage()
    a(f"""
    v_and_b32 v2, 31, v1
    v_lshrrev_b32 v3, 5, v1
    v_bfe_u32 v5, v2, 1, 3
    v_lshlrev_b32 v2, 7, v2
    """)
    for j in range(4):
        a(f"v_or_b32 v6, {2*j}, v3\nv_xor_b32 v6, v6, v5\nv_lshl_add_u32 v{14+j}, v6, 4, v2")
    a(f"""
    v_bfe_u32 v2, v1, 2, 2
    v_lshl_add_u32 v2, v3, 3, v2
    v_mul_u32_u24 v2, 352, v2
    v_bfe_u32 v3, v1, 4, 1
    v_mul_u32_u24 v3, {UPOFF}, v3
    v_add_u32 v2, v2, v3
    v_and_b32 v3, 3, v1
    v_lshl_add_u32 v2, v3, 3, v2
    s_lshl_b32 s6, s3, 5
    s_add_u32 s6, s6, {RING_L}
    v_add_u32 v18, s6, v2
    v_mov_b32 v20, {SYNC_L}
    v_mov_b32 v21, 1
    """)
    for i in range(96):
        a(f"v_mov_b32 v{ACC+i}, 0")
    for i in range(20):
        a(f"v_mov_b32 v{FB+i}, 0")
    def reads(F, j, kk):
        a(f"ds_read_b128 {vr(F,4)}, v{14+j}")
        a(f"ds_read_b128 {vr(F+4,4)}, v{14+j} offset:4096")
        for u in range(3):
            off = kk*16*352 + u*128
            a(f"ds_read_b64_tr_b16 {vr(F+8+4*u,2)}, v19 offset:{off}")
            a(f"ds_read_b64_tr_b16 {vr(F+10+4*u,2)}, v19 offset:{off+1408}")
    def mfmas(F):
        for u in range(3):
            for rt in range(2):
                A_ = ACC + 16*(2*u+rt)
                a(f"v_mfma_f32_32x32x16_bf16 {vr(A_,16)}, {vr(F+8+4*u,4)}, {vr(F+4*rt,4)}, {vr(A_,16)}")
    a("s_mov_b32 s51, 8\n.p2align 6\nG1_loop:")
    for half in range(2):
        a("s_waitcnt vmcnt(6)")
        a("v_add_u32 v19, s49, v18")
        subbar(a, 20, 21, 22, 50, 6, 4)
        dma_stage()
        reads(FA, 2*half, 0)
        mfmas(FB)
        reads(FB, 2*half+1, 1)
        a(f"""
        s_add_u32 s49, s49, {STG}
        s_cmp_eq_u32 s49, {3*STG}
        s_cselect_b32 s49, 0, s49
        s_waitcnt lgkmcnt(8)
        """)
        mfmas(FA)
    for j in range(4):
        a(f"v_add_u32 v{14+j}, 8192, v{14+j}")
    a("s_sub_u32 s51, s51, 1\ns_cmp_lg_u32 s51, 0\ns_cbranch_scc1 G1_loop")
    a("s_waitcnt lgkmcnt(0)")
    mfmas(FB)
    c1 = -2.0*math.sqrt(2.0/math.pi)*LOG2E
    c2 = c1*0.044715
    a(f"""
    v_mov_b32 v2, {f2u(c1):#x}
    v_mov_b32 v3, {f2u(c1):#x}
    v_mov_b32 v4, {f2u(c2):#x}
    v_mov_b32 v5, {f2u(c2):#x}
    v_mov_b32 v6, 1.0
    v_mov_b32 v7, 1.0
    v_lshlrev_b32 v8, 4, v1
    s_mul_i32 s44, s5, 11
    s_add_u32 s44, s44, s3
    s_lshl_b32 s45, s4, 11
    """)
    srd(a, 8, 38, 39, HF_SZ, add=HF)
    for u in range(3):
        skip = a.label("G1_skip")
        if u == 2:
            a(f"s_cmp_eq_u32 s3, 3\ns_cbranch_scc1 {skip}")
        a(f"""
        s_cmp_ge_u32 s44, 86
        s_cbranch_scc1 {skip}
        s_lshl_b32 s46, s44, 16
        s_add_u32 s46, s46, s45
        """)
        for rt in range(2):
            A_ = ACC + 16*(2*u+rt)
            t = T + 16*rt
            for p in range(4):
                a(f"v_pk_mul_f32 {vr(t+2*p,2)}, {vr(A_+2*p,2)}, {vr(A_+2*p,2)}")
            for p in range(4):
                a(f"v_pk_fma_f32 {vr(t+2*p,2)}, {vr(t+2*p,2)}, v[4:5], v[2:3]")
            for p in range(4):
                a(f"v_pk_mul_f32 {vr(t+2*p,2)}, {vr(t+2*p,2)}, {vr(A_+2*p,2)}")
            for i in range(8):
                a(f"v_exp_f32 v{t+i}, v{t+i}")
            for p in range(4):
                a(f"v_pk_mul_f32 {vr(A_+2*p,2)}, {vr(A_+2*p,2)}, {vr(A_+8+2*p,2)}")
            for p in range(4):
                a(f"v_pk_add_f32 {vr(t+2*p,2)}, {vr(t+2*p,2)}, v[6:7]")
            for i in range(8):
                a(f"v_rcp_f32 v{t+i}, v{t+i}")
            a("s_nop 0")
            for p in range(4):
                a(f"v_pk_mul_f32 {vr(A_+2*p,2)}, {vr(A_+2*p,2)}, {vr(t+2*p,2)}")
            for p in range(4):
                a(f"v_cvt_pk_bf16_f32 v{t+8+p}, v{A_+2*p}, v{A_+2*p+1}")
            a(f"buffer_store_dwordx4 {vr(t+8,4)}, v8, s[8:11], s46 offen offset:{1024*rt}")
        a(f"{skip}:\ns_add_u32 s44, s44, 4")
    a("s_endpgm")

def gen_k2(name):
    a = Asm()
    a.endlabel = "K2_end"
    a(f".p2align 8\n.type {name},@function\n{name}:")
    a(f"""
    s_load_dwordx2 s[28:29], s[0:1], {A_X}
    s_load_dwordx4 s[32:35], s[0:1], {A_WG}
    s_load_dwordx2 s[38:39], s[0:1], {A_WS}
    """)
    prologue(a)
    a(f"""
    v_lshlrev_b32 v2, 2, v1
    v_add_u32 v2, {SYNC_L}, v2
    v_mov_b32 v3, 0
    s_mov_b64 exec, 0xffff
    ds_write_b32 v2, v3
    s_mov_b64 exec, -1
    s_waitcnt lgkmcnt(0)
    s_barrier
    s_cmp_ge_u32 s3, 4
    s_cbranch_scc1 K2_ffn
    """)
    gen_att(a)
    a("K2_ffn:")
    gen_g1(a)
    a("K2_end:\ns_endpgm")
    return a.text(), kdesc(name, 200)
```

```python
from asmlib import *
from common import *

WO_L = 65536
K3_LDS = 131072

def gen_k3(name):
    a = Asm()
    a.endlabel = "K3_end"
    a(f".p2align 8\n.type {name},@function\n{name}:")
    a(f"""
    s_load_dwordx2 s[30:31], s[0:1], {A_WO}
    s_load_dwordx2 s[32:33], s[0:1], {A_WD}
    s_load_dwordx2 s[34:35], s[0:1], {A_OUT}
    s_load_dwordx2 s[38:39], s[0:1], {A_WS}
    """)
    prologue(a)
    ACC, BR, FA, OFR = 24, 88, 152, 168
    a(f"""
    v_lshrrev_b32 v2, 3, v1
    v_and_b32 v3, 7, v1
    v_bfe_u32 v6, v2, 1, 1
    v_lshlrev_b32 v6, 2, v6
    v_xor_b32 v6, v6, v3
    v_lshlrev_b32 v6, 4, v6
    v_lshl_add_u32 v4, v2, 10, v6
    s_lshl_b32 s6, s5, 7
    v_add_u32 v4, s6, v4
    s_lshl_b32 s7, s3, 14
    v_add_u32 v5, s7, v4
    v_lshlrev_b32 v7, 4, v1
    s_lshl_b32 s6, s3, 16
    s_lshl_b32 s40, s4, 11
    s_add_u32 s6, s6, s40
    v_add_u32 v6, s6, v7
    v_bfe_u32 v2, v1, 2, 2
    v_lshrrev_b32 v3, 5, v1
    v_lshl_add_u32 v3, v3, 2, v2
    v_lshlrev_b32 v3, 7, v3
    v_bfe_u32 v2, v1, 3, 1
    v_lshl_add_u32 v3, v2, 6, v3
    v_bfe_u32 v2, v1, 4, 1
    v_lshl_add_u32 v3, v2, 5, v3
    v_and_b32 v2, 3, v1
    v_lshl_add_u32 v3, v2, 3, v3
    v_add_u32 v8, s7, v3
    v_xor_b32 v9, 64, v8
    s_lshr_b32 s6, s3, 1
    s_lshl_b32 s6, s6, 6
    v_xor_b32 v10, s6, v3
    v_add_u32 v10, {WO_L}, v10
    s_and_b32 s41, s3, 1
    s_lshl_b32 s42, s4, 1
    s_add_u32 s42, s42, s41
    s_lshl_b32 s43, s42, 7
    s_lshl_b32 s44, s42, 15
    v_and_b32 v11, 31, v1
    v_lshlrev_b32 v2, 2, v11
    s_lshl_b32 s45, s3, 17
    s_waitcnt lgkmcnt(0)
    """)
    srd(a, 8, 32, 33, 1376*1024)
    srd(a, 12, 38, 39, HF_SZ, add=HF)
    srd(a, 16, 30, 31, 524288)
    srd(a, 20, 38, 39, OF_SZ, add=OF)
    srd(a, 24, 38, 39, GB_SZ, add=GB)
    vm = Counter(a, "vmcnt", 63)
    lg = Counter(a, "lgkmcnt", 15)
    a("buffer_load_dword v12, v2, s[24:27], s43 offen"); vm.issue("g")
    def ld(i):
        for j in range(2):
            a(f"s_add_u32 m0, s7, {(i%8)*2048 + j*1024}\ns_mov_b32 s6, {i*65536 + j*8192}\nbuffer_load_dwordx4 v5, s[8:11], s6 offen lds"); vm.issue(i)
        a(f"s_mov_b32 s6, {i*262144}")
        for rt in range(2):
            a(f"buffer_load_dwordx4 {vr(BR+8*(i%8)+4*rt,4)}, v6, s[12:15], s6 offen offset:{1024*rt}"); vm.issue(i)
    def rd(i):
        F = FA + 8*(i%2)
        for p in range(2):
            a(f"ds_read_b64_tr_b16 {vr(F+4*p,2)}, v{8+p} offset:{(i%8)*2048}"); lg.issue(i)
            a(f"ds_read_b64_tr_b16 {vr(F+4*p+2,2)}, v{8+p} offset:{(i%8)*2048+1024}"); lg.issue(i)
    oreg = {}
    def ldo(h, reg):
        oreg[h] = reg
        a(f"s_add_u32 s6, s44, {(h//4)*4096}")
        a(f"buffer_load_dwordx4 {vr(reg,4)}, v7, s[20:23], s6 offen offset:{(h%4)*1024}"); vm.issue(f"o{h}")
    NS = 22
    for i in range(7):
        ld(i)
    for j in range(16):
        a(f"s_add_u32 m0, s7, {WO_L + j*1024}\ns_add_u32 s6, s45, {j*8192}\nbuffer_load_dwordx4 v4, s[16:19], s6 offen lds"); vm.issue("wo")
    vm.wait(0)
    rd(0)
    nh = 0
    for i in range(NS):
        if i + 7 < NS:
            ld(i + 7)
        if 2 <= i and nh < 22:
            for _ in range(2):
                ldo(nh, OFR + 4*nh); nh += 1
        if i >= 16 and nh < 32:
            for q in range(2):
                ldo(nh, BR + 8*((i-1) % 8) + 4*q); nh += 1
        if i + 1 < NS:
            vm.wait(i + 1)
            rd(i + 1)
        lg.wait(i)
        F = FA + 8*(i%2)
        for p in range(2):
            for rt in range(2):
                A_ = ACC + 16*(rt + 2*p)
                cin = "0" if i == 0 else vr(A_, 16)
                a(f"v_mfma_f32_32x32x16_bf16 {vr(A_,16)}, {vr(F+4*p,4)}, {vr(BR+8*(i%8)+4*rt,4)}, {cin}")
    assert nh == 32
    a(f"v_add_u32 v13, s7, v7\ns_nop 10")
    FIN = 8
    FIN = FA
    labels = [a.label("K3_red") for _ in range(4)]
    done = a.label("K3_reddone")
    for f in range(1, 4):
        a(f"s_cmp_eq_u32 s3, {f}\ns_cbranch_scc1 {labels[f]}")
    for f in range(4):
        a(f"{labels[f]}:")
        for d in range(1, 4):
            Tt = (f + d) & 3
            for q in range(4):
                a(f"ds_write_b128 v13, {vr(ACC+16*Tt+4*q,4)} offset:{(d-1)*4096 + q*1024}")
        for i in range(16):
            a(f"v_mov_b32 v{FIN+i}, v{ACC+16*f+i}")
        if f < 3:
            a(f"s_branch {done}")
    a(f"{done}:")
    vm.wait("wo")
    a("s_waitcnt lgkmcnt(0)\ns_barrier")
    for d in range(1, 4):
        a(f"s_sub_u32 s6, s3, {d}\ns_and_b32 s6, s6, 3\ns_lshl_b32 s6, s6, 14\nv_add_u32 v{13+d}, s6, v7")
    for d in range(1, 4):
        for q in range(4):
            a(f"ds_read_b128 {vr(ACC+16*(d-1)+4*q,4)}, v{13+d} offset:{(d-1)*4096 + q*1024}")
    a("v_sub_f32 v12, 1.0, v12")
    for d in range(1, 4):
        a(f"s_waitcnt lgkmcnt({4*(3-d)})")
        for i in range(16):
            a(f"v_add_f32 v{FIN+i}, v{FIN+i}, v{ACC+16*(d-1)+i}")
    lg.q = []
    WF = ACC
    def rdw(h):
        F = WF + 4*(h % 4)
        a(f"ds_read_b64_tr_b16 {vr(F,2)}, v10 offset:{2048*h}"); lg.issue(h)
        a(f"ds_read_b64_tr_b16 {vr(F+2,2)}, v10 offset:{2048*h+1024}"); lg.issue(h)
    for h in range(3):
        rdw(h)
    for i in range(16):
        a(f"v_mul_f32 v{FIN+i}, v{FIN+i}, v12")
    for h in range(32):
        if h + 3 < 32:
            rdw(h + 3)
        vm.wait(f"o{h}")
        lg.wait(h)
        a(f"v_mfma_f32_32x32x16_bf16 {vr(FIN,16)}, {vr(WF+4*(h%4),4)}, {vr(oreg[h],4)}, {vr(FIN,16)}")
    srd(a, 24, 34, 35, 2048*1024)
    a(f"""
    v_lshrrev_b32 v2, 5, v1
    v_lshlrev_b32 v2, 4, v2
    v_lshl_add_u32 v2, v11, 10, v2
    s_lshl_b32 s6, s5, 7
    s_add_u32 s6, s6, s44
    s_lshr_b32 s46, s3, 1
    s_lshl_b32 s46, s46, 6
    s_add_u32 s6, s6, s46
    s_nop 1
    """)
    P = ACC
    for i in range(8):
        a(f"v_cvt_pk_bf16_f32 v{P+i}, v{FIN+2*i}, v{FIN+2*i+1}")
    a(f"""
    s_nop 1
    v_permlane32_swap_b32 v{P}, v{P+2}
    v_permlane32_swap_b32 v{P+1}, v{P+3}
    v_permlane32_swap_b32 v{P+4}, v{P+6}
    v_permlane32_swap_b32 v{P+5}, v{P+7}
    s_nop 1
    buffer_store_dwordx4 {vr(P,4)}, v2, s[24:27], s6 offen
    buffer_store_dwordx4 {vr(P+4,4)}, v2, s[24:27], s6 offen offset:32
    """)
    a("K3_end:\ns_endpgm")
    return a.text(), kdesc(name, 256)
```

```python
import sys
from k1 import gen_k1, K1_LDS
from k2 import gen_k2, K2_LDS
from k3 import gen_k3, K3_LDS
hdr = open("gated_mix__grouped_kv_mqa__geglu_ffn__prompt.s.ref").read().split("; Override launch")[0]
ks = [("qkv_kernel", gen_k1, 512, K1_LDS), ("att_kernel", gen_k2, 512, K2_LDS), ("fin_kernel", gen_k3, 256, K3_LDS)]
out = hdr
for n, g, b, l in ks:
    out += f"; @launch kernel={n} grid=(256,1,1) block=({b},1,1) lds={l}\n"
out += '.amdgcn_target "amdgcn-amd-amdhsa--gfx950"\n.text\n'
descs = ""
for n, g, b, l in ks:
    t, d = g(n)
    out += f".globl {n}\n" + t
    descs += ".p2align 6\n" + d
out += '.section .rodata,"a"\n' + descs
path = sys.argv[1] if len(sys.argv) > 1 else "gated_mix__grouped_kv_mqa__geglu_ffn__prompt.s"
open(path, "w").write(out)
print("wrote", path, len(out), "bytes")
```

```python
import math, os, struct
A_X, A_WQ, A_WK, A_WV, A_WO, A_BX, A_WG, A_WU, A_WD, A_GW, A_OUT, A_DBG, A_WS = [8*i for i in range(13)]
QF, QF_SZ = 0x000000, 0x200000
OF, OF_SZ = 0x200000, 0x200000
KF, KF_SZ = 0x400000, 0x10000
VF, VF_SZ = 0x410000, 0x10000
GB, GB_SZ = 0x420000, 0x2000
KN, KN_SZ = 0x422000, 0x200
QN, QN_SZ = 0x423000, 0x1000
FL, FL_SZ = 0x430000, 0xC000
HF, HF_SZ = 0x500000, 86*0x10000
def f2u(x):
    return struct.unpack("<I", struct.pack("<f", x))[0]
LOG2E = math.log2(math.e)
C_K = 0.25 * LOG2E
T_BOUND = 48.0
INSTR = int(os.environ.get("INSTR", "0"))
TS = 0xC00000
```

```python
from asmlib import *
from common import *

P_X, P_WQ, P_WK, P_WV, P_WO, P_WG, P_WU, P_WD, P_GW, P_OUT, P_DBG, P_WS = 56, 58, 60, 62, 64, 68, 70, 72, 74, 76, 78, 80
X_L = 0
R_L = 65536
STG = 22656
UPOFF = 11264 + 128
WKV_L = R_L
GW_L = R_L + 16384
WQ_L = R_L + STG
RED_L = R_L + 3*STG
QX_L = R_L + 88192
SYNC_L = QX_L + 8192
LDS_TOTAL = SYNC_L + 128
WO_L = 65536
SY_F, SY_A, SY_KVGO, SY_HGO, SY_PAIR, SY_QN = 0, 4, 8, 12, 16, 32
POS = (0, 3, 6)
SPIN = 200000
SC = "sc1"

def ts_begin(a):
    if INSTR:
        a("s_memrealtime s[90:91]\ns_memtime s[92:93]")
def ts_mark(a, slot):
    if INSTR:
        a(f"s_memtime s[94:95]\ns_waitcnt lgkmcnt(0)\ns_sub_u32 s{82+slot}, s94, s92")
def ts_end(a):
    if not INSTR:
        return
    a(f"""
    s_waitcnt vmcnt(0)
    s_memrealtime s[94:95]
    s_memtime s[96:97]
    s_waitcnt lgkmcnt(0)
    s_mov_b64 exec, -1
    s_add_u32 s8, s{P_WS}, {TS}
    s_addc_u32 s9, s{P_WS+1}, 0
    s_mov_b32 s10, {256*8*64}
    s_mov_b32 s11, 0x20000
    s_lshl_b32 s6, s2, 3
    s_add_u32 s6, s6, s3
    s_lshl_b32 s6, s6, 6
    s_sub_u32 s96, s96, s92
    v_mov_b32 v0, s90
    v_mov_b32 v1, s94
    v_mov_b32 v2, s96
    """)
    for i in range(8):
        a(f"v_mov_b32 v{3+i}, s{82+i}")
    a(f"""
    v_mov_b32 v11, 0
    v_mov_b32 v12, 0
    s_mov_b64 exec, 1
    buffer_store_dwordx4 v[0:3], v12, s[8:11], s6 offen
    buffer_store_dwordx4 v[4:7], v12, s[8:11], s6 offen offset:16
    buffer_store_dwordx4 v[8:11], v12, s[8:11], s6 offen offset:32
    """)

def wsrd(a, d, off, size):
    srd(a, d, P_WS, P_WS+1, size, add=off)

def lds_arrive(a, vaddr, vone, off):
    a(f"s_mov_b64 exec, 1\nds_add_u32 v{vaddr}, v{vone} offset:{off}\ns_mov_b64 exec, -1")
def lds_wait_ge(a, vaddr, off, vtmp, stmp, target, sleep=None):
    lp = a.label("LW"); dn = a.label("LWd")
    a(f"""
    {lp}:
    ds_read_b32 v{vtmp}, v{vaddr} offset:{off}
    s_waitcnt lgkmcnt(0)
    v_readfirstlane_b32 s{stmp}, v{vtmp}
    s_cmp_ge_u32 s{stmp}, {target}
    s_cbranch_scc1 {dn}
    """)
    if sleep:
        a(f"s_sleep {sleep}")
    a(f"s_sub_u32 s98, s98, 1\ns_cbranch_scc0 {lp}\n{dn}:")

def get_nonce(a, srdreg, vtmp, vzero, snonce, scnt):
    srd(a, srdreg, P_DBG, P_DBG+1, 256)
    lp = a.label("NON"); dn = a.label("NONd")
    a(f"""
    v_mov_b32 v{vzero}, 0
    s_mov_b32 s{scnt}, {SPIN}
    {lp}:
    buffer_load_dword v{vtmp}, v{vzero}, {sr(srdreg,4)}, 0 offen {SC}
    s_waitcnt vmcnt(0)
    v_readfirstlane_b32 s{snonce}, v{vtmp}
    s_cmp_lg_u32 s{snonce}, 0
    s_cbranch_scc1 {dn}
    s_sleep 4
    s_sub_u32 s{scnt}, s{scnt}, 1
    s_cmp_lg_u32 s{scnt}, 0
    s_cbranch_scc1 {lp}
    {dn}:
    """)

def publish(a, srdreg, which, vtmp, vtmp2, snonce, stmp):
    a(f"""
    s_lshl_b32 s{stmp}, s4, 3
    s_add_u32 s{stmp}, s{stmp}, s5
    s_lshl_b32 s{stmp}, s{stmp}, 6
    s_add_u32 s{stmp}, s{stmp}, {which*0x4000}
    v_mov_b32 v{vtmp}, s{snonce}
    v_mov_b32 v{vtmp2}, 0
    s_mov_b64 exec, 1
    buffer_store_dword v{vtmp}, v{vtmp2}, {sr(srdreg,4)}, s{stmp} offen {SC}
    s_mov_b64 exec, -1
    """)

def poll_group(a, srdreg, which, vaddr, vtmp, snonce, stmp, scnt, sleep):
    lp = a.label("PG"); dn = a.label("PGd")
    a(f"""
    s_lshl_b32 s{stmp}, s4, 9
    s_add_u32 s{stmp}, s{stmp}, {which*0x4000}
    v_and_b32 v{vaddr}, 7, v1
    v_lshlrev_b32 v{vaddr}, 6, v{vaddr}
    s_mov_b32 s{scnt}, {SPIN}
    {lp}:
    buffer_load_dword v{vtmp}, v{vaddr}, {sr(srdreg,4)}, s{stmp} offen {SC}
    s_waitcnt vmcnt(0)
    v_cmp_ne_u32 vcc, s{snonce}, v{vtmp}
    s_cbranch_vccz {dn}
    s_sleep {sleep}
    s_sub_u32 s{scnt}, s{scnt}, 1
    s_cmp_lg_u32 s{scnt}, 0
    s_cbranch_scc1 {lp}
    {dn}:
    """)

def gen_A(a):
    Q, O, S, KV = 8, 24, 88, 152
    a(f"""
    v_lshrrev_b32 v2, 3, v1
    v_and_b32 v3, 7, v1
    s_lshl_b32 s6, s3, 3
    v_add_u32 v5, s6, v2
    v_bfe_u32 v6, v5, 1, 3
    v_xor_b32 v6, v6, v3
    v_lshlrev_b32 v6, 4, v6
    v_lshl_add_u32 v7, v5, 10, v6
    v_lshlrev_b32 v4, 4, v1
    s_lshl_b32 s7, s3, 10
    s_lshl_b32 s32, s3, 12
    v_add_u32 v9, s32, v4
    s_mov_b32 s33, 32768
    s_lshl_b32 s6, s4, 16
    s_cmp_ge_u32 s5, 4
    s_waitcnt lgkmcnt(0)
    s_cselect_b32 s34, s{P_WV}, s{P_WK}
    s_cselect_b32 s35, s{P_WV+1}, s{P_WK+1}
    """)
    srd(a, 16, 34, 35, 16384)
    srd(a, 8, P_X, P_X+1, 65536, add="s6")
    srd(a, 20, P_GW, P_GW+1, 1024)
    a(f"s_add_u32 m0, s32, {WKV_L}\ns_nop 0")
    for j in range(4):
        a(f"buffer_load_dwordx4 v9, s[16:19], 0 offen offset:{1024*j} lds")
    a(f"s_mov_b32 m0, {GW_L}\ns_nop 0\nbuffer_load_dwordx4 v4, s[20:23], 0 offen lds")
    for kc in range(8):
        for i4 in range(2):
            so = "s33" if i4 else "0"
            a(f"s_add_u32 m0, s7, {X_L + kc*8192 + i4*4096 - kc*128}\ns_nop 0\nbuffer_load_dwordx4 v7, s[8:11], {so} offen offset:{kc*128} lds")
    a("s_barrier")
    ts_mark(a, 0)
    a(f"""
    s_or_b32 s6, s2, s3
    s_cmp_lg_u32 s6, 0
    s_cbranch_scc1 A_nonon
    s_memrealtime s[34:35]
    """)
    srd(a, 20, P_DBG, P_DBG+1, 256)
    a(f"""
    s_waitcnt lgkmcnt(0)
    s_or_b32 s34, s34, 1
    v_mov_b32 v2, s34
    v_mov_b32 v3, 0
    s_mov_b64 exec, 1
    buffer_store_dword v2, v3, s[20:23], 0 offen {SC}
    s_mov_b64 exec, -1
    s_waitcnt vmcnt(0)
    A_nonon:
    """)
    a(f"""
    v_and_b32 v2, 31, v1
    v_lshrrev_b32 v3, 5, v1
    v_bfe_u32 v5, v2, 1, 3
    s_and_b32 s6, s3, 1
    s_lshl_b32 s6, s6, 12
    v_lshl_add_u32 v2, v2, 7, s6
    """)
    for j in range(4):
        a(f"v_or_b32 v6, {2*j}, v3\nv_xor_b32 v6, v6, v5\nv_lshl_add_u32 v{10+j}, v6, 4, v2")
    a(f"""
    v_bfe_u32 v2, v1, 2, 2
    v_lshl_add_u32 v3, v3, 3, v2
    v_lshlrev_b32 v3, 7, v3
    v_bfe_u32 v2, v1, 3, 1
    s_lshr_b32 s6, s3, 1
    v_xor_b32 v2, s6, v2
    v_lshl_add_u32 v3, v2, 6, v3
    v_bfe_u32 v2, v1, 4, 1
    v_lshl_add_u32 v3, v2, 5, v3
    v_and_b32 v2, 3, v1
    v_lshl_add_u32 v3, v2, 3, v3
    v_add_u32 v14, {WQ_L}, v3
    s_waitcnt vmcnt(8)
    s_barrier
    """)
    for b in range(4):
        for i in range(4, 12, 2):
            a(f"v_mov_b64 {vr(KV+12*b+i,2)}, 0")
    a("s_mov_b32 exec_lo, 0x110000\ns_mov_b32 exec_hi, 0x110000\nv_mov_b32 v2, 0x3f803f80\nv_mov_b32 v3, 0x3f803f80")
    for b in range(4):
        for i in range(4, 12, 2):
            a(f"v_mov_b64 {vr(KV+12*b+i,2)}, v[2:3]")
    a("s_mov_b64 exec, -1")
    a("s_waitcnt vmcnt(0)\ns_barrier")
    ts_mark(a, 1)
    ACC, FR = S, S + 16
    lg = Counter(a, "lgkmcnt", 15)
    def rd(ks):
        f = FR + 8*(ks % 4)
        a(f"ds_read_b128 {vr(f,4)}, v{10 + (ks&3)} offset:{(ks>>2)*8192}"); lg.issue(ks)
        a(f"ds_read_b64_tr_b16 {vr(f+4,2)}, v14 offset:{2048*ks}"); lg.issue(ks)
        a(f"ds_read_b64_tr_b16 {vr(f+6,2)}, v14 offset:{2048*ks+512}"); lg.issue(ks)
    for c in range(4):
        a("s_barrier")
        for i in range(4):
            rd(8*c + i)
        if c == 0:
            for i in range(0, 64, 2):
                a(f"v_mov_b64 {vr(O+i,2)}, 0")
        for i in range(8):
            ks = 8*c + i
            lg.wait(ks)
            f = FR + 8*(ks % 4)
            cin = "0" if ks == 0 else vr(ACC, 16)
            a(f"v_mfma_f32_32x32x16_bf16 {vr(ACC,16)}, {vr(f+4,4)}, {vr(f,4)}, {cin}")
            if i + 4 < 8:
                rd(ks + 4)
    ts_mark(a, 2)
    a(f"""
    s_lshl_b32 s6, s3, 11
    s_add_u32 s6, s6, {QX_L}
    v_add_u32 v2, s6, v4
    s_and_b32 s6, s3, 1
    s_lshl_b32 s6, s6, 11
    s_add_u32 s6, s6, {QX_L}
    v_add_u32 v3, s6, v4
    v_mov_b32 v15, {SYNC_L}
    v_mov_b32 v16, 1
    s_lshl_b32 s6, s3, 2
    v_add_u32 v17, s6, v15
    s_nop 1
    """)
    for i in range(8):
        a(f"v_cvt_pk_bf16_f32 v{FR+i}, v{ACC+2*i}, v{ACC+2*i+1}")
    a(f"ds_write_b128 v2, {vr(FR,4)}\nds_write_b128 v2, {vr(FR+4,4)} offset:1024")
    a(f"v_mul_f32 v5, v{ACC}, v{ACC}\nv_mul_f32 v6, v{ACC+8}, v{ACC+8}")
    for i in range(1, 8):
        a(f"v_fmac_f32 v5, v{ACC+i}, v{ACC+i}\nv_fmac_f32 v6, v{ACC+8+i}, v{ACC+8+i}")
    a(f"""
    v_mov_b32 v7, v5
    v_mov_b32 v9, v6
    s_nop 1
    v_permlane32_swap_b32 v5, v7
    v_permlane32_swap_b32 v6, v9
    s_nop 1
    v_add_f32 v5, v5, v7
    v_add_f32 v6, v6, v9
    v_max_u32 v5, v5, v6
    v_mov_b32 v7, v5
    s_nop 1
    v_permlane16_swap_b32 v5, v7
    s_nop 1
    v_max_u32 v5, v5, v7
    """)
    for sh in (8, 4, 2, 1):
        a(f"s_nop 1\nv_max_u32_dpp v5, v5, v5 row_ror:{sh} row_mask:0xf bank_mask:0xf")
    a(f"ds_write_b32 v17, v5 offset:{SY_QN}")
    lds_arrive(a, 15, 16, SY_A)
    a(f"""
    v_lshrrev_b32 v2, 5, v1
    v_and_b32 v5, 15, v1
    v_lshlrev_b32 v5, 4, v5
    v_lshl_add_u32 v5, v2, 8, v5
    v_mov_b32 v6, 0xdddd
    v_lshlrev_b32 v7, 3, v1
    v_and_b32 v2, 31, v1
    v_lshlrev_b32 v2, 2, v2
    s_and_b32 s6, s3, 1
    s_lshl_b32 s7, s4, 1
    s_add_u32 s7, s7, s6
    s_lshl_b32 s40, s7, 7
    s_lshl_b32 s7, s7, 5
    s_lshl_b32 s41, s5, 2
    s_add_u32 s7, s7, s41
    s_lshl_b32 s7, s7, 10
    s_lshr_b32 s42, s3, 1
    s_lshl_b32 s43, s42, 15
    s_mov_b32 s44, 0xffff
    s_mov_b32 s45, 0xffff
    """)
    wsrd(a, 12, KF, KF_SZ)
    wsrd(a, 16, VF, VF_SZ)
    wsrd(a, 20, KN, KN_SZ)
    wsrd(a, 24, GB, GB_SZ)
    wsrd(a, 28, FL, FL_SZ)
    a("s_cmp_lg_u32 s3, 0\ns_cbranch_scc1 A_waitgo")
    get_nonce(a, 8, 18, 19, 46, 47)
    a(f"""
    v_lshlrev_b32 v18, 6, v1
    v_add_u32 v19, 8192, v18
    s_movk_i32 s48, 4096
    s_mov_b32 s47, {SPIN}
    A_kvpoll:
    buffer_load_dword v20, v18, s[28:31], 0 offen {SC}
    buffer_load_dword v21, v18, s[28:31], s48 offen {SC}
    buffer_load_dword v22, v19, s[28:31], 0 offen {SC}
    buffer_load_dword v23, v19, s[28:31], s48 offen {SC}
    s_waitcnt vmcnt(0)
    v_xor_b32 v20, s46, v20
    v_xor_b32 v21, s46, v21
    v_xor_b32 v22, s46, v22
    v_xor_b32 v23, s46, v23
    v_or_b32 v20, v20, v21
    v_or3_b32 v20, v20, v22, v23
    v_cmp_ne_u32 vcc, 0, v20
    s_cbranch_vccz A_kvok
    s_sleep 6
    s_sub_u32 s47, s47, 1
    s_cmp_lg_u32 s47, 0
    s_cbranch_scc1 A_kvpoll
    A_kvok:
    ds_write_b32 v15, v16 offset:{SY_KVGO}
    s_branch A_go
    A_waitgo:
    """)
    lds_wait_ge(a, 15, SY_KVGO, 18, 6, 1, sleep=2)
    a("A_go:")
    ts_mark(a, 3)
    def loadkv(b):
        a(f"""
        buffer_load_dwordx4 {vr(KV+12*b,4)}, v4, s[12:15], s43 offen {SC}
        s_mov_b64 exec, s[44:45]
        buffer_load_dwordx4 {vr(KV+12*b+4,4)}, v5, s[16:19], s43 offen {SC}
        buffer_load_dwordx4 {vr(KV+12*b+8,4)}, v5, s[16:19], s43 offen offset:512 {SC}
        s_mov_b64 exec, -1
        s_add_u32 s43, s43, 1024
        """)
    a(f"buffer_load_dwordx2 {vr(S,2)}, v7, s[20:23], 0 offen {SC}")
    a(f"buffer_load_dword v7, v2, s[24:27], s40 offen {SC}")
    for b in range(3):
        loadkv(b)
    lds_wait_ge(a, 15, SY_A, 18, 6, 4)
    a(f"ds_read_b128 {vr(S+4,4)}, v15 offset:{SY_QN}")
    for t in range(4):
        a(f"ds_read_b128 {vr(Q+4*t,4)}, v3 offset:{(t>>1)*4096 + (t&1)*1024}")
    a(f"""
    s_waitcnt vmcnt(10)
    v_max_u32 v2, v{S}, v{S+1}
    v_mov_b32 v3, v2
    s_nop 1
    v_permlane32_swap_b32 v2, v3
    s_nop 1
    v_max_u32 v2, v2, v3
    v_mov_b32 v3, v2
    s_nop 1
    v_permlane16_swap_b32 v2, v3
    s_nop 1
    v_max_u32 v2, v2, v3
    """)
    for sh in (8, 4, 2, 1):
        a(f"s_nop 1\nv_max_u32_dpp v2, v2, v2 row_ror:{sh} row_mask:0xf bank_mask:0xf")
    a(f"""
    s_waitcnt lgkmcnt(0)
    v_max_u32 v3, v{S+4}, v{S+5}
    v_max3_u32 v3, v3, v{S+6}, v{S+7}
    v_mul_f32 v2, v3, v2
    v_mov_b32 v3, {f2u(T_BOUND*T_BOUND):#x}
    v_cmp_nle_f32 vcc, v2, v3
    s_nop 4
    s_cbranch_vccnz ATT_slow
    """)
    def step(i, pv=True, qk=True, ex=True):
        t = i % 4
        m = {}
        if qk:
            kb = ((i+1)//4) % 4
            s = ""
            if (i+1) % 4 == 0:
                s = "s_waitcnt vmcnt(6)\n"
            m[POS[0]] = s + f"v_mfma_f32_32x32x16_bf16 {vr(S+16*((i+1)%4),16)}, {vr(KV+12*kb,4)}, {vr(Q+4*((i+1)%4),4)}, 0"
        if pv:
            vb = ((i-1)//4) % 4
            tp = (i-1) % 4
            m[POS[1]] = f"v_smfmac_f32_32x32x32_bf16 {vr(O+16*tp,16)}, {vr(KV+12*vb+4,4)}, {vr(S+16*tp,8)}, v6"
            m[POS[2]] = f"v_smfmac_f32_32x32x32_bf16 {vr(O+16*tp,16)}, {vr(KV+12*vb+8,4)}, {vr(S+16*tp+8,8)}, v6"
        for e in range(16):
            if e in m:
                a(m[e])
            if ex:
                a(f"v_exp_f32 v{S+16*t+e}, v{S+16*t+e}")
            if e == 10 and t == 1 and ex:
                loadkv((i//4 + 3) % 4)
    a("s_waitcnt vmcnt(6)")
    ts_mark(a, 4)
    a(f"""
    v_mfma_f32_32x32x16_bf16 {vr(S,16)}, {vr(KV,4)}, {vr(Q,4)}, 0
    s_mov_b32 s52, 8
    s_setprio 1
    s_nop 8
    """)
    step(0, pv=False)
    a("s_branch ATT_mid\n.p2align 6\nATT_loop:")
    step(16)
    a("ATT_mid:")
    for i in range(1, 16):
        step(i)
    a("s_sub_u32 s52, s52, 1\ns_cmp_lg_u32 s52, 0\ns_cbranch_scc1 ATT_loop")
    step(16, qk=False, ex=False)
    a("ATT_epi:")
    ts_mark(a, 5)
    a(f"""
    s_mul_i32 s6, s3, 4608
    s_add_u32 s6, s6, {RED_L}
    v_add_u32 v2, s6, v4
    v_lshrrev_b32 v3, 2, v4
    v_add_u32 v3, s6, v3
    s_xor_b32 s53, s3, 2
    s_mul_i32 s6, s53, 4608
    s_add_u32 s6, s6, {RED_L}
    v_add_u32 v8, s6, v4
    v_lshrrev_b32 v9, 2, v4
    v_add_u32 v9, s6, v9
    s_lshl_b32 s6, s3, 2
    s_add_u32 s6, s6, {SYNC_L + SY_PAIR}
    v_mov_b32 v10, s6
    v_xor_b32 v11, 8, v10
    v_mov_b32 v15, {SYNC_L}
    v_mov_b32 v16, 1
    s_lshl_b32 s6, s42, 11
    s_add_u32 s7, s7, s6
    s_cmp_lg_u32 s42, 0
    s_cbranch_scc1 ATT_x1
    """)
    for kh in range(2):
        if kh: a("ATT_x1:")
        send = [2, 3] if kh == 0 else [0, 1]
        keep = [0, 1] if kh == 0 else [2, 3]
        for j, t in enumerate(send):
            a(f"ds_write_b128 v2, {vr(O+16*t,4)} offset:{2304*j}")
            a(f"ds_write_b128 v2, {vr(O+16*t+4,4)} offset:{2304*j+1024}")
            a(f"ds_write_b32 v3, v{O+16*t+8} offset:{2304*j+2048}")
        a("ds_write_b32 v10, v16")
        lds_wait_ge(a, 11, 0, 13, 6, 1)
        R = S
        for j in range(2):
            a(f"ds_read_b128 {vr(R+12*j,4)}, v8 offset:{2304*j}")
            a(f"ds_read_b128 {vr(R+12*j+4,4)}, v8 offset:{2304*j+1024}")
            a(f"ds_read_b32 v{R+12*j+8}, v9 offset:{2304*j+2048}")
        wsrd(a, 20, OF, OF_SZ)
        a("s_waitcnt vmcnt(0) lgkmcnt(0)")
        for j, t in enumerate(keep):
            a(f"v_add_f32 v{R+12*j+8}, v{R+12*j+8}, v{O+16*t+8}")
        for j, t in enumerate(keep):
            a(f"v_rcp_f32 v{R+12*j+8}, v{R+12*j+8}")
        for j, t in enumerate(keep):
            for i in range(8):
                a(f"v_add_f32 v{R+12*j+i}, v{R+12*j+i}, v{O+16*t+i}")
            a(f"v_mul_f32 v{R+12*j+8}, v{R+12*j+8}, v7")
            for i in range(8):
                a(f"v_mul_f32 v{R+12*j+i}, v{R+12*j+i}, v{R+12*j+8}")
            for i in range(4):
                a(f"v_cvt_pk_bf16_f32 v{R+32+4*j+i}, v{R+12*j+2*i}, v{R+12*j+2*i+1}")
            a(f"buffer_store_dwordx4 {vr(R+32+4*j,4)}, v4, s[20:23], s7 offen offset:{1024*j} {SC}")
        if kh == 0:
            a("s_branch ATT_x2")
    a("ATT_x2:\ns_setprio 0\ns_waitcnt vmcnt(0)")
    lds_arrive(a, 15, 16, SY_A)
    a("s_cmp_lg_u32 s3, 0\ns_cbranch_scc1 TAIL")
    lds_wait_ge(a, 15, SY_A, 13, 6, 8)
    publish(a, 28, 2, 13, 14, 46, 6)
    poll_group(a, 28, 2, 13, 14, 46, 6, 47, 2)
    a("s_branch TAIL")
    a("ATT_slow:")
    C = S + 16
    for t in range(4):
        l1 = a.label("ATT_s1"); l2 = a.label("ATT_s2")
        a(f"""
        s_waitcnt vmcnt(0)
        s_mov_b32 s43, 0
        v_mov_b32 v2, 0xff800000
        {l1}:
        buffer_load_dwordx4 {vr(KV,4)}, v4, s[12:15], s43 offen {SC}
        s_add_u32 s43, s43, 1024
        s_waitcnt vmcnt(0)
        v_mfma_f32_32x32x16_bf16 {vr(S,16)}, {vr(KV,4)}, {vr(Q+4*t,4)}, 0
        s_nop 15
        """)
        for i in range(8):
            a(f"v_max3_f32 v2, v{S+2*i}, v{S+2*i+1}, v2")
        a(f"""
        s_cmp_lt_u32 s43, 65536
        s_cbranch_scc1 {l1}
        v_mov_b32 v3, v2
        s_nop 1
        v_permlane32_swap_b32 v2, v3
        s_nop 1
        v_max_f32 v2, v2, v3
        """)
        for i in range(16):
            a(f"v_sub_f32 v{C+i}, 0, v2")
        a(f"""
        s_lshl_b32 s43, s42, 15
        s_mov_b32 s52, 32
        {l2}:
        """)
        loadkv(0)
        a(f"""
        s_waitcnt vmcnt(0)
        v_mfma_f32_32x32x16_bf16 {vr(S,16)}, {vr(KV,4)}, {vr(Q+4*t,4)}, {vr(C,16)}
        s_nop 15
        """)
        for i in range(16):
            a(f"v_exp_f32 v{S+i}, v{S+i}")
        a(f"""
        s_nop 1
        v_smfmac_f32_32x32x32_bf16 {vr(O+16*t,16)}, {vr(KV+4,4)}, {vr(S,8)}, v6
        v_smfmac_f32_32x32x32_bf16 {vr(O+16*t,16)}, {vr(KV+8,4)}, {vr(S+8,8)}, v6
        s_sub_u32 s52, s52, 1
        s_cmp_lg_u32 s52, 0
        s_cbranch_scc1 {l2}
        """)
    a("s_branch ATT_epi")

def gen_F(a):
    ACC, FA, FB, T = 24, 120, 140, 160
    a(f"""
    s_sub_u32 s33, s3, 4
    v_lshlrev_b32 v2, 2, v1
    v_add_u32 v2, {SYNC_L}, v2
    v_mov_b32 v3, 0
    s_mov_b64 exec, 0xffff
    ds_write_b32 v2, v3
    s_mov_b64 exec, -1
    v_lshrrev_b32 v2, 3, v1
    v_and_b32 v3, 7, v1
    v_bfe_u32 v6, v2, 1, 1
    v_lshlrev_b32 v6, 2, v6
    v_xor_b32 v6, v6, v3
    v_lshlrev_b32 v6, 4, v6
    v_lshl_add_u32 v23, v2, 10, v6
    s_lshl_b32 s6, s5, 7
    v_add_u32 v23, s6, v23
    s_lshl_b32 s6, s33, 15
    v_add_u32 v7, s6, v23
    s_lshl_b32 s7, s33, 12
    s_mul_i32 s44, s5, 352
    s_movk_i32 s45, 2979
    s_movk_i32 s46, 2752
    """)
    for m in range(6):
        a(f"s_add_u32 s6, s33, {4*m}")
        if m == 5:
            a("s_cmp_ge_u32 s33, 2\ns_cselect_b32 s6, s33, s6")
        a(f"""
        s_cmp_ge_u32 s6, 11
        s_cselect_b32 s42, 11, 0
        s_cselect_b32 s43, {UPOFF}, 0
        s_sub_u32 s6, s6, s42
        s_lshl_b32 s42, s6, 10
        s_add_u32 s43, s43, s42
        s_add_u32 s{34+m}, s43, {R_L}
        s_lshl_b32 s6, s6, 6
        v_add_u32 v2, s6, v1
        v_mul_lo_u32 v3, v2, s45
        v_lshrrev_b32 v3, 16, v3
        v_mul_u32_u24 v5, 22, v3
        v_sub_u32 v2, v2, v5
        v_mul_lo_u32 v3, v3, s46
        v_lshl_add_u32 v2, v2, 4, v3
        v_add_u32 v{8+m}, s44, v2
        """)
    a(f"""
    v_and_b32 v2, 31, v1
    v_lshrrev_b32 v3, 5, v1
    v_bfe_u32 v5, v2, 1, 3
    v_lshlrev_b32 v2, 7, v2
    """)
    for j in range(4):
        a(f"v_or_b32 v6, {2*j}, v3\nv_xor_b32 v6, v6, v5\nv_lshl_add_u32 v{14+j}, v6, 4, v2")
    a(f"""
    v_bfe_u32 v2, v1, 2, 2
    v_lshl_add_u32 v2, v3, 3, v2
    v_mul_u32_u24 v2, 352, v2
    v_bfe_u32 v3, v1, 4, 1
    v_mul_u32_u24 v3, {UPOFF}, v3
    v_add_u32 v2, v2, v3
    v_and_b32 v3, 3, v1
    v_lshl_add_u32 v2, v3, 3, v2
    s_lshl_b32 s6, s33, 5
    s_add_u32 s6, s6, {R_L}
    v_add_u32 v18, s6, v2
    v_mov_b32 v20, {SYNC_L}
    v_mov_b32 v21, 1
    s_mov_b32 s47, 0
    s_mov_b32 s48, 0
    s_mov_b32 s49, 0
    s_mov_b32 s50, 0
    s_waitcnt lgkmcnt(0)
    """)
    WSZ = 512*2752
    srd(a, 8, P_WQ, P_WQ+1, 524288)
    srd(a, 12, P_WG, P_WG+1, WSZ)
    srd(a, 16, P_WU, P_WU+1, WSZ)
    a(f"s_cmp_eq_u32 s33, 3\ns_cselect_b32 s42, s{P_WU}, s{P_WG}\ns_cselect_b32 s43, s{P_WU+1}, s{P_WG+1}")
    srd(a, 20, 42, 43, WSZ)
    a(f"s_cmp_ge_u32 s33, 2\ns_cselect_b32 s42, s{P_WG}, s{P_WU}\ns_cselect_b32 s43, s{P_WG+1}, s{P_WU+1}")
    srd(a, 24, 42, 43, WSZ)
    SRDS = [12, 12, 20, 16, 16, 24]
    a("s_barrier")
    ts_mark(a, 0)
    vm0 = Counter(a, "vmcnt", 63)
    for c in range(4):
        for j in range(4):
            a(f"s_add_u32 m0, s7, {WQ_L + (128*c + 8*j)*128}\ns_mov_b32 s6, {(128*c + 8*j)*1024}\nbuffer_load_dwordx4 v7, s[8:11], s6 offen lds"); vm0.issue(f"c{c}")
    def dma_stage(vm=None):
        for m in range(6):
            a(f"s_add_u32 m0, s{34+m}, s48\ns_nop 0\nbuffer_load_dwordx4 v{8+m}, {sr(SRDS[m],4)}, s47 offen lds")
            if vm: vm.issue("st")
        a(f"""
        s_add_u32 s47, s47, {32*2752}
        s_add_u32 s48, s48, {STG}
        s_cmp_eq_u32 s48, {3*STG}
        s_cselect_b32 s48, 0, s48
        """)
    def bq_seq(vm):
        vm.wait("c0"); a("s_barrier"); dma_stage(vm)
        vm.wait("c1"); a("s_barrier")
        vm.wait("c2"); a("s_barrier"); dma_stage(vm)
        vm.wait("c3"); a("s_barrier")
    def zero_acc():
        for i in range(0, 96, 2):
            a(f"v_mov_b64 {vr(ACC+i,2)}, 0")
        for i in range(0, 20, 2):
            a(f"v_mov_b64 {vr(FB+i,2)}, 0")
    a("s_cmp_eq_u32 s33, 0\ns_cbranch_scc1 F_kv")
    a("s_barrier")
    zero_acc()
    a("s_barrier")
    vm = Counter(a, "vmcnt", 63); vm.q = list(vm0.q)
    bq_seq(vm)
    a("s_branch G1_start")
    a("F_kv:")
    KT = 200
    a(f"""
    s_and_b32 s42, s5, 3
    s_lshl_b32 s6, s42, 4
    v_and_b32 v2, 15, v1
    v_add_u32 v{KT}, s6, v2
    v_lshrrev_b32 v3, 4, v1
    v_bfe_u32 v5, v{KT}, 1, 3
    v_xor_b32 v5, v5, v3
    v_lshlrev_b32 v5, 4, v5
    v_lshl_add_u32 v{KT+1}, v{KT}, 7, v5
    v_xor_b32 v{KT+2}, 64, v{KT+1}
    v_bfe_u32 v5, v1, 2, 2
    v_lshl_add_u32 v5, v3, 3, v5
    v_lshlrev_b32 v5, 5, v5
    v_and_b32 v6, 3, v1
    v_lshl_add_u32 v5, v6, 3, v5
    v_add_u32 v{KT+3}, {WKV_L}, v5
    v_lshlrev_b32 v{KT+4}, 4, v3
    v_add_u32 v{KT+4}, {GW_L}, v{KT+4}
    s_cmp_ge_u32 s5, 4
    s_cbranch_scc1 F_v
    """)
    for isv in (0, 1):
        if isv:
            a("F_v:")
        vm = Counter(a, "vmcnt", 63); vm.q = list(vm0.q)
        lg = Counter(a, "lgkmcnt", 15)
        FRK = 24
        D0, D1 = KT + 8, KT + 12
        def rdk(s):
            f = FRK + 12*(s % 4)
            a(f"ds_read_b128 {vr(f,4)}, v{KT+1+(s&1)} offset:{(s>>1)*8192}"); lg.issue(s)
            a(f"ds_read_b64_tr_b16 {vr(f+4,2)}, v{KT+3} offset:{1024*s}"); lg.issue(s)
            a(f"ds_read_b64_tr_b16 {vr(f+6,2)}, v{KT+3} offset:{1024*s+128}"); lg.issue(s)
            if not isv:
                a(f"ds_read_b128 {vr(f+8,4)}, v{KT+4} offset:{64*s}"); lg.issue(s)
        for hb in range(2):
            a("s_barrier")
            for i in range(3):
                rdk(8*hb + i)
            for i in range(8):
                s = 8*hb + i
                lg.wait(s)
                if i + 3 < 8:
                    rdk(s + 3)
                f = FRK + 12*(s % 4)
                c0 = "0" if s == 0 else vr(D0, 4)
                c1 = "0" if s == 0 else vr(D1, 4)
                if isv:
                    a(f"v_mfma_f32_16x16x32_bf16 {vr(D0,4)}, {vr(f,4)}, {vr(f+4,4)}, {c0}")
                else:
                    a(f"v_mfma_f32_16x16x32_bf16 {vr(D0,4)}, {vr(f+4,4)}, {vr(f,4)}, {c0}")
                    a(f"v_mfma_f32_16x16x32_bf16 {vr(D1,4)}, {vr(f+8,4)}, {vr(f,4)}, {c1}")
        P = KT + 16
        if isv:
            a(f"""
            s_lshl_b32 s6, s4, 2
            s_add_u32 s6, s6, s42
            s_lshl_b32 s6, s6, 9
            v_lshrrev_b32 v5, 5, v1
            v_lshlrev_b32 v5, 8, v5
            v_lshl_add_u32 v5, v2, 4, v5
            v_and_b32 v6, 1, v3
            v_lshl_add_u32 v5, v6, 3, v5
            """)
            wsrd(a, 28, VF, VF_SZ)
            a(f"""
            v_cvt_pk_bf16_f32 v{P}, v{D0}, v{D0+1}
            v_cvt_pk_bf16_f32 v{P+1}, v{D0+2}, v{D0+3}
            buffer_store_dwordx2 {vr(P,2)}, v5, s[28:31], s6 offen {SC}
            """); vm.issue("kv")
        else:
            a(f"""
            s_lshl_b32 s6, s4, 11
            v_lshrrev_b32 v5, 5, v{KT}
            v_lshlrev_b32 v5, 10, v5
            v_and_b32 v6, 31, v{KT}
            v_lshl_add_u32 v5, v6, 4, v5
            v_and_b32 v6, 1, v3
            v_lshl_add_u32 v5, v6, 9, v5
            v_lshrrev_b32 v6, 1, v3
            v_lshl_add_u32 v5, v6, 3, v5
            s_mov_b32 s43, {f2u(C_K):#x}
            """)
            wsrd(a, 28, KF, KF_SZ)
            a(f"""
            v_mul_f32 v{D0}, s43, v{D0}
            v_mul_f32 v{D0+1}, s43, v{D0+1}
            v_mul_f32 v{D0+2}, s43, v{D0+2}
            v_mul_f32 v{D0+3}, s43, v{D0+3}
            v_cvt_pk_bf16_f32 v{P}, v{D0}, v{D0+1}
            v_cvt_pk_bf16_f32 v{P+1}, v{D0+2}, v{D0+3}
            buffer_store_dwordx2 {vr(P,2)}, v5, s[28:31], s6 offen {SC}
            v_mul_f32 v{D1}, {f2u(-LOG2E):#x}, v{D1}
            v_exp_f32 v{D1}, v{D1}
            v_mul_f32 v6, v{D0}, v{D0}
            v_add_f32 v{D1}, 1.0, v{D1}
            v_fmac_f32 v6, v{D0+1}, v{D0+1}
            v_rcp_f32 v{D1}, v{D1}
            v_fmac_f32 v6, v{D0+2}, v{D0+2}
            v_fmac_f32 v6, v{D0+3}, v{D0+3}
            v_mov_b32 v5, v6
            s_nop 1
            v_permlane32_swap_b32 v6, v5
            s_nop 1
            v_add_f32 v6, v6, v5
            v_mov_b32 v5, v6
            s_nop 1
            v_permlane16_swap_b32 v6, v5
            s_nop 1
            v_add_f32 v6, v6, v5
            """); vm.issue("kv")
            for sh in (8, 4, 2, 1):
                a(f"s_nop 1\nv_max_u32_dpp v6, v6, v6 row_ror:{sh} row_mask:0xf bank_mask:0xf")
            wsrd(a, 28, GB, GB_SZ + 0x200)
            a(f"""
            s_lshl_b32 s6, s4, 8
            v_lshlrev_b32 v5, 2, v{KT}
            s_mov_b64 exec, 0xffff
            buffer_store_dword v{D1}, v5, s[28:31], s6 offen {SC}
            s_lshl_b32 s6, s4, 2
            s_add_u32 s6, s6, s42
            s_lshl_b32 s6, s6, 2
            s_add_u32 s6, s6, {KN - GB}
            v_mov_b32 v5, 0
            s_mov_b64 exec, 1
            buffer_store_dword v6, v5, s[28:31], s6 offen {SC}
            s_mov_b64 exec, -1
            """); vm.issue("kv"); vm.issue("kv")
        ts_mark(a, 1)
        srd(a, 28, P_DBG, P_DBG+1, 256)
        a(f"v_mov_b32 v5, 0\nbuffer_load_dword v{KT+20}, v5, s[28:31], 0 offen {SC}"); vm.issue("kv")
        zero_acc()
        vm.wait("c0"); a("s_barrier"); dma_stage(vm)
        vm.wait("c1"); a("s_barrier")
        vm.wait("c2"); a("s_barrier")
        vm.wait("kv")
        ok = a.label("F_nok")
        a(f"v_readfirstlane_b32 s54, v{KT+20}\ns_cmp_lg_u32 s54, 0\ns_cbranch_scc1 {ok}")
        get_nonce(a, 28, 5, 6, 54, 55)
        a(f"{ok}:")
        wsrd(a, 28, FL, FL_SZ)
        publish(a, 28, 0, 5, 6, 54, 6)
        ts_mark(a, 2)
        dma_stage()
        a("s_barrier")
        if not isv:
            a("s_branch G1_start")
    def reads(F, j, kk):
        a(f"ds_read_b128 {vr(F,4)}, v{14+j}")
        a(f"ds_read_b128 {vr(F+4,4)}, v{14+j} offset:4096")
        for u in range(3):
            off = kk*16*352 + u*128
            a(f"ds_read_b64_tr_b16 {vr(F+8+4*u,2)}, v19 offset:{off}")
            a(f"ds_read_b64_tr_b16 {vr(F+10+4*u,2)}, v19 offset:{off+1408}")
    def mfmas(F):
        for u in range(3):
            for rt in range(2):
                A_ = ACC + 16*(2*u+rt)
                a(f"v_mfma_f32_32x32x16_bf16 {vr(A_,16)}, {vr(F+8+4*u,4)}, {vr(F+4*rt,4)}, {vr(A_,16)}")
    a("G1_start:")
    ts_mark(a, 3)
    a("s_mov_b32 s51, 8\n.p2align 6\nG1_loop:")
    for half in range(2):
        a("s_setprio 2\ns_waitcnt vmcnt(6)")
        a("v_add_u32 v19, s49, v18")
        lds_arrive(a, 20, 21, SY_F)
        a("s_add_u32 s50, s50, 4")
        if half == 0:
            pass
        lds_wait_ge(a, 20, SY_F, 22, 6, "s50")
        a("s_setprio 0")
        dma_stage()
        reads(FA, 2*half, 0)
        mfmas(FB)
        reads(FB, 2*half+1, 1)
        a(f"""
        s_add_u32 s49, s49, {STG}
        s_cmp_eq_u32 s49, {3*STG}
        s_cselect_b32 s49, 0, s49
        s_waitcnt lgkmcnt(8)
        """)
        mfmas(FA)
    a("s_setprio 2")
    for j in range(4):
        a(f"v_add_u32 v{14+j}, 8192, v{14+j}")
    a("s_sub_u32 s51, s51, 1\ns_cmp_lg_u32 s51, 0\ns_cbranch_scc1 G1_loop")
    a("s_waitcnt lgkmcnt(0)")
    mfmas(FB)
    ts_mark(a, 4)
    c1 = -2.0*math.sqrt(2.0/math.pi)*LOG2E
    c2 = c1*0.044715
    a(f"""
    v_mov_b32 v2, {f2u(c1):#x}
    v_mov_b32 v3, {f2u(c1):#x}
    v_mov_b32 v4, {f2u(c2):#x}
    v_mov_b32 v5, {f2u(c2):#x}
    v_mov_b32 v6, 1.0
    v_mov_b32 v7, 1.0
    v_lshlrev_b32 v8, 4, v1
    s_mul_i32 s44, s5, 11
    s_add_u32 s44, s44, s33
    s_lshl_b32 s45, s4, 11
    """)
    wsrd(a, 12, HF, HF_SZ)
    for u in range(3):
        skip = a.label("G1_skip")
        if u == 2:
            a(f"s_cmp_eq_u32 s33, 3\ns_cbranch_scc1 {skip}")
        a(f"""
        s_cmp_ge_u32 s44, 86
        s_cbranch_scc1 {skip}
        s_lshl_b32 s46, s44, 16
        s_add_u32 s46, s46, s45
        """)
        for rt in range(2):
            A_ = ACC + 16*(2*u+rt)
            t = T + 16*rt
            for p in range(4):
                a(f"v_pk_mul_f32 {vr(t+2*p,2)}, {vr(A_+2*p,2)}, {vr(A_+2*p,2)}")
            for p in range(4):
                a(f"v_pk_fma_f32 {vr(t+2*p,2)}, {vr(t+2*p,2)}, v[4:5], v[2:3]")
            for p in range(4):
                a(f"v_pk_mul_f32 {vr(t+2*p,2)}, {vr(t+2*p,2)}, {vr(A_+2*p,2)}")
            for i in range(8):
                a(f"v_exp_f32 v{t+i}, v{t+i}")
            for p in range(4):
                a(f"v_pk_mul_f32 {vr(A_+2*p,2)}, {vr(A_+2*p,2)}, {vr(A_+8+2*p,2)}")
            for p in range(4):
                a(f"v_pk_add_f32 {vr(t+2*p,2)}, {vr(t+2*p,2)}, v[6:7]")
            for i in range(8):
                a(f"v_rcp_f32 v{t+i}, v{t+i}")
            a("s_nop 0")
            for p in range(4):
                a(f"v_pk_mul_f32 {vr(A_+2*p,2)}, {vr(A_+2*p,2)}, {vr(t+2*p,2)}")
            for p in range(4):
                a(f"v_cvt_pk_bf16_f32 v{t+8+p}, v{A_+2*p}, v{A_+2*p+1}")
            a(f"buffer_store_dwordx4 {vr(t+8,4)}, v8, s[12:15], s46 offen offset:{1024*rt} {SC}")
        a(f"{skip}:\ns_add_u32 s44, s44, 4")
    GACC, BR, GFA = 24, 88, 152
    a(f"""
    s_lshl_b32 s7, s33, 14
    v_add_u32 v5, s7, v23
    s_lshl_b32 s6, s33, 16
    s_add_u32 s6, s6, s45
    v_add_u32 v6, s6, v8
    v_bfe_u32 v2, v1, 2, 2
    v_lshrrev_b32 v3, 5, v1
    v_lshl_add_u32 v3, v3, 2, v2
    v_lshlrev_b32 v3, 7, v3
    v_bfe_u32 v2, v1, 3, 1
    v_lshl_add_u32 v3, v2, 6, v3
    v_bfe_u32 v2, v1, 4, 1
    v_lshl_add_u32 v3, v2, 5, v3
    v_and_b32 v2, 3, v1
    v_lshl_add_u32 v3, v2, 3, v3
    v_add_u32 v9, s7, v3
    v_xor_b32 v10, 64, v9
    s_and_b32 s41, s33, 1
    s_lshl_b32 s42, s4, 1
    s_add_u32 s42, s42, s41
    s_lshl_b32 s43, s42, 7
    v_and_b32 v11, 31, v1
    v_lshlrev_b32 v11, 2, v11
    s_lshl_b32 s46, s33, 17
    """)
    srd(a, 8, P_WD, P_WD+1, 1376*1024)
    srd(a, 16, P_WO, P_WO+1, 524288)
    wsrd(a, 24, GB, GB_SZ)
    a("s_waitcnt vmcnt(0)")
    lds_arrive(a, 20, 21, SY_F)
    a("s_add_u32 s50, s50, 4")
    lds_wait_ge(a, 20, SY_F, 22, 6, "s50")
    ts_mark(a, 5)
    a("s_cmp_lg_u32 s33, 0\ns_cbranch_scc1 G2_nopub")
    publish(a, 28, 1, 13, 14, 54, 6)
    a("G2_nopub:")
    def ldw(i, vm=None):
        for j in range(2):
            a(f"s_add_u32 m0, s7, {(i%8)*2048 + j*1024}\ns_mov_b32 s6, {i*65536 + j*8192}\nbuffer_load_dwordx4 v5, s[8:11], s6 offen lds")
            if vm: vm.issue(i)
    def ldh(i, vm):
        a(f"s_mov_b32 s6, {i*262144}")
        for rt in range(2):
            a(f"buffer_load_dwordx4 {vr(BR+8*(i%8)+4*rt,4)}, v6, s[12:15], s6 offen offset:{1024*rt} {SC}"); vm.issue(i)
    for i in range(7):
        ldw(i)
    for j in range(16):
        a(f"s_add_u32 m0, s7, {WO_L + j*1024}\ns_add_u32 s6, s46, {j*8192}\nbuffer_load_dwordx4 v23, s[16:19], s6 offen lds")
    a("s_cmp_lg_u32 s33, 0\ns_cbranch_scc1 G2_wait")
    poll_group(a, 28, 1, 13, 14, 54, 6, 55, 8)
    a(f"ds_write_b32 v20, v21 offset:{SY_HGO}\ns_branch G2_go\nG2_wait:")
    lds_wait_ge(a, 20, SY_HGO, 22, 6, 1, sleep=4)
    a("G2_go:")
    lds_wait_ge(a, 20, SY_KVGO, 22, 6, 1, sleep=4)
    a("s_waitcnt vmcnt(0)\ns_setprio 0")
    ts_mark(a, 6)
    vm = Counter(a, "vmcnt", 63)
    lg = Counter(a, "lgkmcnt", 15)
    a(f"buffer_load_dword v12, v11, s[24:27], s43 offen {SC}"); vm.issue("g")
    for i in range(7):
        ldh(i, vm)
    def rd(i):
        F = GFA + 8*(i%2)
        for p in range(2):
            a(f"ds_read_b64_tr_b16 {vr(F+4*p,2)}, v{9+p} offset:{(i%8)*2048}"); lg.issue(i)
            a(f"ds_read_b64_tr_b16 {vr(F+4*p+2,2)}, v{9+p} offset:{(i%8)*2048+1024}"); lg.issue(i)
    NS = 22
    rd(0)
    for i in range(NS):
        if i + 7 < NS:
            ldw(i + 7, vm); ldh(i + 7, vm)
        if i + 1 < NS:
            vm.wait(i + 1)
            rd(i + 1)
        else:
            vm.wait(i)
        lg.wait(i)
        F = GFA + 8*(i%2)
        for p in range(2):
            for rt in range(2):
                A_ = GACC + 16*(rt + 2*p)
                cin = "0" if i == 0 else vr(A_, 16)
                a(f"v_mfma_f32_32x32x16_bf16 {vr(A_,16)}, {vr(F+4*p,4)}, {vr(BR+8*(i%8)+4*rt,4)}, {cin}")
    a(f"s_setprio 2\nv_add_u32 v13, s7, v8\nv_sub_f32 v12, 1.0, v12\ns_nop 8")
    FIN = GFA
    labels = [a.label("G2_red") for _ in range(4)]
    done = a.label("G2_reddone")
    for f in range(1, 4):
        a(f"s_cmp_eq_u32 s33, {f}\ns_cbranch_scc1 {labels[f]}")
    for f in range(4):
        a(f"{labels[f]}:")
        for d in range(1, 4):
            Tt = (f + d) & 3
            for q in range(4):
                a(f"ds_write_b128 v13, {vr(GACC+16*Tt+4*q,4)} offset:{(d-1)*4096 + q*1024}")
        for i in range(0, 16, 2):
            a(f"v_mov_b64 {vr(FIN+i,2)}, {vr(GACC+16*f+i,2)}")
        if f < 3:
            a(f"s_branch {done}")
    a(f"{done}:")
    lds_arrive(a, 20, 21, SY_F)
    a("s_add_u32 s50, s50, 4")
    for d in range(1, 4):
        a(f"s_sub_u32 s6, s33, {d}\ns_and_b32 s6, s6, 3\ns_lshl_b32 s6, s6, 14\nv_add_u32 v{13+d}, s6, v8")
    lds_wait_ge(a, 20, SY_F, 22, 6, "s50")
    for d in range(1, 4):
        for q in range(4):
            a(f"ds_read_b128 {vr(GACC+16*(d-1)+4*q,4)}, v{13+d} offset:{(d-1)*4096 + q*1024}")
    for d in range(1, 4):
        a(f"s_waitcnt lgkmcnt({4*(3-d)})")
        for i in range(16):
            a(f"v_add_f32 v{FIN+i}, v{FIN+i}, v{GACC+16*(d-1)+i}")
    for i in range(16):
        a(f"v_mul_f32 v{FIN+i}, v{FIN+i}, v12")
    for q in range(4):
        a(f"ds_write_b128 v13, {vr(FIN+4*q,4)} offset:{3*4096 + q*1024}")
    a("s_setprio 0")
    ts_mark(a, 7)

def gen_tail(a):
    ACC, OB, WF = 24, 56, 88
    a(f"""
    TAIL:
    v_lshlrev_b32 v4, 4, v1
    s_and_b32 s32, s3, 1
    s_lshr_b32 s33, s3, 1
    s_lshl_b32 s6, s4, 1
    s_add_u32 s34, s6, s32
    s_lshl_b32 s35, s34, 15
    s_lshl_b32 s6, s33, 13
    s_add_u32 s36, s35, s6
    s_add_u32 s37, s36, 4096
    v_bfe_u32 v2, v1, 2, 2
    v_lshrrev_b32 v3, 5, v1
    v_lshl_add_u32 v3, v3, 2, v2
    v_lshlrev_b32 v3, 7, v3
    v_bfe_u32 v2, v1, 3, 1
    v_lshl_add_u32 v3, v2, 6, v3
    v_bfe_u32 v2, v1, 4, 1
    v_lshl_add_u32 v3, v2, 5, v3
    v_and_b32 v2, 3, v1
    v_lshl_add_u32 v3, v2, 3, v3
    s_lshl_b32 s6, s33, 14
    s_add_u32 s6, s6, {WO_L}
    v_add_u32 v5, s6, v3
    v_xor_b32 v6, 64, v5
    """)
    wsrd(a, 20, OF, OF_SZ)
    srd(a, 24, P_OUT, P_OUT+1, 2048*1024)
    a("s_waitcnt lgkmcnt(0)\ns_barrier")
    vm = Counter(a, "vmcnt", 63); lg = Counter(a, "lgkmcnt", 15)
    for h in range(8):
        a(f"buffer_load_dwordx4 {vr(OB+4*h,4)}, v4, s[20:23], s{36 + h//4} offen offset:{(h%4)*1024} {SC}"); vm.issue(h)
    def rdw(h):
        F = WF + 8*h
        for p in range(2):
            a(f"ds_read_b64_tr_b16 {vr(F+4*p,2)}, v{5+p} offset:{2048*h}"); lg.issue(h)
            a(f"ds_read_b64_tr_b16 {vr(F+4*p+2,2)}, v{5+p} offset:{2048*h+1024}"); lg.issue(h)
    for h in range(3):
        rdw(h)
    a(f"""
    s_and_b32 s6, s3, 3
    s_lshl_b32 s6, s6, 14
    s_lshr_b32 s7, s3, 2
    s_mul_i32 s7, s7, 6144
    s_add_u32 s6, s6, s7
    v_add_u32 v7, s6, v4
    """)
    for d in range(1, 4):
        a(f"""
        s_sub_u32 s6, s33, {d}
        s_and_b32 s6, s6, 3
        s_lshl_b32 s6, s6, 1
        s_add_u32 s6, s6, s32
        s_lshr_b32 s7, s6, 2
        s_mul_i32 s7, s7, 6144
        s_and_b32 s6, s6, 3
        s_lshl_b32 s6, s6, 14
        s_add_u32 s6, s6, s7
        v_add_u32 v{7+d}, s6, v4
        """)
    a(f"""
    s_lshr_b32 s6, s33, 1
    s_lshl_b32 s7, s6, 1
    s_add_u32 s7, s7, s32
    s_lshl_b32 s7, s7, 14
    s_and_b32 s38, s33, 1
    s_lshl_b32 s39, s38, 11
    s_add_u32 s7, s7, s39
    s_add_u32 s7, s7, {3*4096}
    v_add_u32 v11, s7, v4
    v_and_b32 v2, 31, v1
    v_lshrrev_b32 v3, 5, v1
    v_lshlrev_b32 v3, 4, v3
    v_lshl_add_u32 v12, v2, 10, v3
    s_lshl_b32 s6, s6, 6
    s_lshl_b32 s38, s38, 5
    s_add_u32 s6, s6, s38
    s_lshl_b32 s7, s5, 7
    s_add_u32 s6, s6, s7
    s_add_u32 s40, s6, s35
    """)
    for h in range(8):
        lg.wait(h)
        if h + 3 < 8:
            rdw(h + 3)
        vm.wait(h)
        for p in range(2):
            cin = "0" if h == 0 else vr(ACC+16*p, 16)
            a(f"v_mfma_f32_32x32x16_bf16 {vr(ACC+16*p,16)}, {vr(WF+8*h+4*p,4)}, {vr(OB+4*h,4)}, {cin}")
    FIN = OB
    a(f"ds_read_b128 {vr(FIN,4)}, v11\nds_read_b128 {vr(FIN+4,4)}, v11 offset:1024\ns_nop 9")
    labels = [a.label("T_red") for _ in range(4)]
    done = a.label("T_reddone")
    for q in range(1, 4):
        a(f"s_cmp_eq_u32 s33, {q}\ns_cbranch_scc1 {labels[q]}")
    for q in range(4):
        a(f"{labels[q]}:")
        for d in range(1, 4):
            piece = (q + d) & 3
            for k in range(2):
                a(f"ds_write_b128 v7, {vr(ACC+8*piece+4*k,4)} offset:{(d-1)*2048 + k*1024}")
        a("s_waitcnt lgkmcnt(6)")
        for i in range(8):
            a(f"v_add_f32 v{FIN+i}, v{FIN+i}, v{ACC+8*q+i}")
        if q < 3:
            a(f"s_branch {done}")
    a(f"{done}:\ns_waitcnt lgkmcnt(0)\ns_barrier")
    for d in range(1, 4):
        for k in range(2):
            a(f"ds_read_b128 {vr(WF+8*(d-1)+4*k,4)}, v{7+d} offset:{(d-1)*2048 + k*1024}")
    for d in range(1, 4):
        a(f"s_waitcnt lgkmcnt({2*(3-d)})")
        for i in range(8):
            a(f"v_add_f32 v{FIN+i}, v{FIN+i}, v{WF+8*(d-1)+i}")
    P = ACC
    for i in range(4):
        a(f"v_cvt_pk_bf16_f32 v{P+i}, v{FIN+2*i}, v{FIN+2*i+1}")
    a(f"""
    s_nop 1
    v_permlane32_swap_b32 v{P}, v{P+2}
    v_permlane32_swap_b32 v{P+1}, v{P+3}
    s_nop 1
    buffer_store_dwordx4 {vr(P,4)}, v12, s[24:27], s40 offen
    """)
    ts_end(a)

def gen_mega(name):
    a = Asm()
    a(f".p2align 8\n.type {name},@function\n{name}:")
    a(f"""
    s_load_dwordx16 s[56:71], s[0:1], 0
    s_load_dwordx8 s[72:79], s[0:1], 64
    s_load_dwordx2 s[80:81], s[0:1], 96
    """)
    ts_begin(a)
    a(f"""
    s_cmp_ge_u32 s2, 256
    s_cbranch_scc1 M_end
    v_lshrrev_b32 v2, 6, v0
    v_and_b32 v1, 63, v0
    v_readfirstlane_b32 s3, v2
    s_and_b32 s4, s2, 7
    s_lshr_b32 s5, s2, 3
    s_and_b32 s5, s5, 3
    s_lshl_b32 s5, s5, 3
    s_add_u32 s4, s4, s5
    s_lshr_b32 s5, s2, 5
    s_mov_b32 s98, 0x800000
    s_cmp_ge_u32 s3, 4
    s_cbranch_scc1 M_F
    """)
    gen_A(a)
    a("M_F:")
    gen_F(a)
    gen_tail(a)
    a("M_end:\ns_endpgm")
    return a.text(), kdesc(name, 224)

if __name__ == "__main__":
    import sys
    name = "gated_mix__grouped_kv_mqa__geglu_ffn__prompt_kernel"
    hdr = open("gated_mix__grouped_kv_mqa__geglu_ffn__prompt.s.ref").read().split("; Override launch")[0]
    t, d = gen_mega(name)
    out = hdr + f"; @launch grid=(256,1,1) block=(512,1,1) lds={LDS_TOTAL}\n"
    out += '.amdgcn_target "amdgcn-amd-amdhsa--gfx950"\n.text\n' + f".globl {name}\n" + t
    out += '.section .rodata,"a"\n.p2align 6\n' + d
    path = sys.argv[1] if len(sys.argv) > 1 else "gated_mix__grouped_kv_mqa__geglu_ffn__prompt.s"
    open(path, "w").write(out)
    print("wrote", path, len(out), "bytes")
```

```python
import math, os, struct
A_X, A_WQ, A_WK, A_WV, A_WO, A_BX, A_WG, A_WU, A_WD, A_GW, A_OUT, A_DBG, A_WS = [8*i for i in range(13)]
QF, QF_SZ = 0x000000, 0x200000
OF, OF_SZ = 0x200000, 0x200000
KVREC = 4352
KVF, KVF_SZ = 0x400000, 32*4352
GB, GB_SZ = 0x430000, 0x2000
KN, KN_SZ = 0x432000, 0x200
FL, FL_SZ = 0x438000, 0x3000
HF, HF_SZ = 0x500000, 86*0x10000
def f2u(x):
    return struct.unpack("<I", struct.pack("<f", x))[0]
LOG2E = math.log2(math.e)
C_K = 0.25 * LOG2E
T_BOUND = 48.0
INSTR = int(os.environ.get("INSTR", "0"))
TS = 0xC00000
```

```python
from asmlib import *
from common import *
import os

P_X, P_WQ, P_WK, P_WV, P_WO, P_WG, P_WU, P_WD, P_GW, P_OUT, P_DBG, P_WS = 56, 58, 60, 62, 64, 68, 70, 72, 74, 76, 78, 80
X_L = 0
R_L = 65536
STG = 22656
UPOFF = 11264 + 128
WKV_L = R_L
GW_L = R_L + 16384
WQ_L = R_L + STG
RED_L = 131072
QX_L = R_L + 4*STG
SYNC_L = QX_L + 4096
G_L = SYNC_L + 128
LDS_TOTAL = G_L + 256
WO_L = 65536
SY_F, SY_A, SY_NONCE, SY_HGO, SY_PAIR, SY_QN, SY_QX = 0, 4, 8, 12, 16, 32, 48
POS = (0, 3, 6)
SPIN = 200000
SC = "sc1"

def ts_begin(a):
    if INSTR:
        a("s_memrealtime s[90:91]\ns_memtime s[92:93]")
def ts_mark(a, slot):
    if INSTR:
        a(f"s_memtime s[94:95]\ns_waitcnt lgkmcnt(0)\ns_sub_u32 s{82+slot}, s94, s92")
FM = int(os.environ.get("FM", "0"))
def ts_markF(a, slot):
    if FM == 0:
        ts_mark(a, slot)
def ts_iter(a, sreg):
    if INSTR and FM == 1:
        a("s_memtime s[94:95]\ns_waitcnt lgkmcnt(0)\ns_sub_u32 s94, s94, s92")
        for k in range(4):
            a(f"s_cmp_eq_u32 s{sreg}, {4-k}\ns_cselect_b32 s{82+k}, s94, s{82+k}")
FIT = int(os.environ.get("FIT", "7"))
def ts_in(a, slot):
    if INSTR and FM == 2:
        a(f"s_memtime s[94:95]\ns_waitcnt lgkmcnt(0)\ns_sub_u32 s94, s94, s92\ns_cmp_eq_u32 s51, {FIT}\ns_cselect_b32 s{82+slot}, s94, s{82+slot}")
AM = int(os.environ.get("AM", "0"))
def ts_markA(a, slot):
    if AM == 0:
        ts_mark(a, slot)
def ts_iterA(a, sreg):
    if INSTR and AM == 2:
        for k in range(8):
            a(f"s_cmp_eq_u32 s{sreg}, {8-k}\ns_cselect_b32 s{82+k}, s99, s{82+k}")
        a("s_mov_b32 s99, 0")
    if INSTR and AM == 1:
        a("s_memtime s[94:95]\ns_waitcnt lgkmcnt(0)\ns_sub_u32 s94, s94, s92")
        for k in range(8):
            a(f"s_cmp_eq_u32 s{sreg}, {8-k}\ns_cselect_b32 s{82+k}, s94, s{82+k}")
TM = int(os.environ.get("TM", "0"))
def ts_markT(a, slot):
    if TM == 1:
        ts_mark(a, slot)
def ts_markE(a, slot):
    if AM == 3:
        ts_mark(a, slot)
def ts_markS(a, slot):
    if AM == 4:
        ts_mark(a, slot)
def ts_end(a):
    if not INSTR:
        return
    a(f"""
    s_waitcnt vmcnt(0)
    s_memrealtime s[94:95]
    s_memtime s[96:97]
    s_waitcnt lgkmcnt(0)
    s_mov_b64 exec, -1
    s_add_u32 s8, s{P_WS}, {TS}
    s_addc_u32 s9, s{P_WS+1}, 0
    s_mov_b32 s10, {256*8*64}
    s_mov_b32 s11, 0x20000
    s_lshl_b32 s6, s2, 3
    s_add_u32 s6, s6, s3
    s_lshl_b32 s6, s6, 6
    s_sub_u32 s96, s96, s92
    v_mov_b32 v0, s90
    v_mov_b32 v1, s94
    v_mov_b32 v2, s96
    """)
    for i in range(8):
        a(f"v_mov_b32 v{3+i}, s{82+i}")
    a(f"""
    v_mov_b32 v11, 0
    v_mov_b32 v12, 0
    s_mov_b64 exec, 1
    buffer_store_dwordx4 v[0:3], v12, s[8:11], s6 offen
    buffer_store_dwordx4 v[4:7], v12, s[8:11], s6 offen offset:16
    buffer_store_dwordx4 v[8:11], v12, s[8:11], s6 offen offset:32
    """)

def wsrd(a, d, off, size):
    srd(a, d, P_WS, P_WS+1, size, add=off)

def lds_arrive(a, vaddr, vone, off):
    a(f"s_mov_b64 exec, 1\nds_add_u32 v{vaddr}, v{vone} offset:{off}\ns_mov_b64 exec, -1")
def lds_wait_ge(a, vaddr, off, vtmp, stmp, target, sleep=None):
    lp = a.label("LW"); dn = a.label("LWd")
    a(f"""
    {lp}:
    ds_read_b32 v{vtmp}, v{vaddr} offset:{off}
    s_waitcnt lgkmcnt(0)
    v_readfirstlane_b32 s{stmp}, v{vtmp}
    s_cmp_ge_u32 s{stmp}, {target}
    s_cbranch_scc1 {dn}
    """)
    if sleep:
        a(f"s_sleep {sleep}")
    a(f"s_sub_u32 s98, s98, 1\ns_cbranch_scc0 {lp}\n{dn}:")

def get_nonce(a, srdreg, vtmp, vzero, snonce, scnt):
    srd(a, srdreg, P_DBG, P_DBG+1, 256)
    lp = a.label("NON"); dn = a.label("NONd")
    a(f"""
    v_mov_b32 v{vzero}, 0
    s_mov_b32 s{scnt}, {SPIN}
    {lp}:
    buffer_load_dword v{vtmp}, v{vzero}, {sr(srdreg,4)}, 0 offen {SC}
    s_waitcnt vmcnt(0)
    v_readfirstlane_b32 s{snonce}, v{vtmp}
    s_cmp_lg_u32 s{snonce}, 0
    s_cbranch_scc1 {dn}
    s_sleep 4
    s_sub_u32 s{scnt}, s{scnt}, 1
    s_cmp_lg_u32 s{scnt}, 0
    s_cbranch_scc1 {lp}
    {dn}:
    """)

def publish(a, srdreg, which, vtmp, vtmp2, snonce, stmp):
    a(f"""
    s_lshl_b32 s{stmp}, s4, 5
    s_add_u32 s{stmp}, s{stmp}, s5
    s_lshl_b32 s{stmp}, s{stmp}, 2
    s_add_u32 s{stmp}, s{stmp}, {which*0x1000}
    v_mov_b32 v{vtmp}, s{snonce}
    v_mov_b32 v{vtmp2}, 0
    s_mov_b64 exec, 1
    buffer_store_dword v{vtmp}, v{vtmp2}, {sr(srdreg,4)}, s{stmp} offen {SC}
    s_mov_b64 exec, -1
    """)

def poll_group(a, srdreg, which, vaddr, vtmp, snonce, stmp, scnt, sleep):
    lp = a.label("PG"); dn = a.label("PGd")
    a(f"""
    s_lshl_b32 s{stmp}, s4, 7
    s_add_u32 s{stmp}, s{stmp}, {which*0x1000}
    v_and_b32 v{vaddr}, 7, v1
    v_lshlrev_b32 v{vaddr}, 2, v{vaddr}
    s_mov_b32 s{scnt}, {SPIN}
    {lp}:
    buffer_load_dword v{vtmp}, v{vaddr}, {sr(srdreg,4)}, s{stmp} offen {SC}
    s_waitcnt vmcnt(0)
    v_cmp_ne_u32 vcc, s{snonce}, v{vtmp}
    s_cbranch_vccz {dn}
    s_sleep {sleep}
    s_sub_u32 s{scnt}, s{scnt}, 1
    s_cmp_lg_u32 s{scnt}, 0
    s_cbranch_scc1 {lp}
    {dn}:
    """)

def gen_A(a):
    Q, O, S, KV = 8, 24, 88, 152
    VS, V1 = 200, 201
    a(f"""
    v_lshrrev_b32 v2, 3, v1
    v_and_b32 v3, 7, v1
    s_lshl_b32 s6, s3, 3
    v_add_u32 v5, s6, v2
    v_bfe_u32 v6, v5, 1, 3
    v_xor_b32 v6, v6, v3
    v_lshlrev_b32 v6, 4, v6
    v_lshl_add_u32 v7, v5, 10, v6
    v_lshlrev_b32 v4, 4, v1
    s_lshl_b32 s7, s3, 10
    s_lshl_b32 s32, s3, 12
    v_add_u32 v9, s32, v4
    s_mov_b32 s33, 32768
    s_lshl_b32 s6, s4, 16
    s_add_u32 m0, s32, {WKV_L}
    s_cmp_ge_u32 s5, 4
    s_waitcnt lgkmcnt(0)
    s_cselect_b32 s34, s{P_WV}, s{P_WK}
    s_cselect_b32 s35, s{P_WV+1}, s{P_WK+1}
    """)
    srd(a, 16, 34, 35, 16384)
    for j in range(4):
        a(f"buffer_load_dwordx4 v9, s[16:19], 0 offen offset:{1024*j} lds")
    srd(a, 8, P_X, P_X+1, 65536, add="s6")
    a(f"s_mov_b32 m0, {GW_L}")
    srd(a, 20, P_GW, P_GW+1, 1024)
    a(f"buffer_load_dwordx4 v4, s[20:23], 0 offen lds")
    for kc in range(8):
        for i4 in range(2):
            so = "s33" if i4 else "0"
            a(f"s_add_u32 m0, s7, {X_L + kc*8192 + i4*4096 - kc*128}\ns_nop 0\nbuffer_load_dwordx4 v7, s[8:11], {so} offen offset:{kc*128} lds")
    a(f"""
    v_bfe_u32 v6, v2, 1, 1
    v_lshlrev_b32 v6, 2, v6
    v_xor_b32 v6, v6, v3
    v_lshlrev_b32 v6, 4, v6
    v_lshl_add_u32 v6, v2, 10, v6
    s_lshl_b32 s6, s5, 7
    s_lshl_b32 s34, s3, 15
    s_add_u32 s6, s6, s34
    v_add_u32 v6, s6, v6
    """)
    srd(a, 12, P_WQ, P_WQ+1, 524288)
    def wq(c):
        for j in range(4):
            a(f"s_add_u32 m0, s32, {WQ_L + (128*c + 8*j)*128}\ns_mov_b32 s6, {(128*c + 8*j)*1024}\nbuffer_load_dwordx4 v6, s[12:15], s6 offen lds")
    wq(0)
    a("s_waitcnt vmcnt(12)\ns_barrier")
    wq(1); wq(2); wq(3)
    ts_markA(a, 0)
    a("s_waitcnt vmcnt(16)\ns_barrier")
    ts_markA(a, 1)
    ts_markS(a, 0)
    a(f"""
    v_and_b32 v2, 31, v1
    v_lshrrev_b32 v3, 5, v1
    v_bfe_u32 v5, v2, 1, 3
    s_and_b32 s6, s3, 1
    s_lshl_b32 s6, s6, 12
    v_lshl_add_u32 v2, v2, 7, s6
    """)
    for j in range(4):
        a(f"v_or_b32 v6, {2*j}, v3\nv_xor_b32 v6, v6, v5\nv_lshl_add_u32 v{10+j}, v6, 4, v2")
    a(f"""
    v_bfe_u32 v2, v1, 2, 2
    v_lshl_add_u32 v3, v3, 3, v2
    v_lshlrev_b32 v3, 7, v3
    v_bfe_u32 v2, v1, 3, 1
    s_lshr_b32 s42, s3, 1
    v_xor_b32 v2, s42, v2
    v_lshl_add_u32 v3, v2, 6, v3
    v_bfe_u32 v2, v1, 4, 1
    v_lshl_add_u32 v3, v2, 5, v3
    v_and_b32 v2, 3, v1
    v_lshl_add_u32 v3, v2, 3, v3
    v_add_u32 v14, {WQ_L}, v3
    """)
    ACC, FR = S, S + 16
    lg = Counter(a, "lgkmcnt", 15)
    def rd(ks):
        f = FR + 8*(ks % 4)
        a(f"ds_read_b128 {vr(f,4)}, v{10 + (ks&3)} offset:{(ks>>2)*8192}"); lg.issue(ks)
        a(f"ds_read_b64_tr_b16 {vr(f+4,2)}, v14 offset:{2048*ks}"); lg.issue(ks)
        a(f"ds_read_b64_tr_b16 {vr(f+6,2)}, v14 offset:{2048*ks+512}"); lg.issue(ks)
    for c in range(4):
        a(f"s_waitcnt vmcnt({12 - 4*c})\ns_barrier")
        for i in range(4):
            rd(8*c + i)
        for i in range(8):
            ks = 8*c + i
            lg.wait(ks)
            if ks == 31:
                a("s_barrier")
            f = FR + 8*(ks % 4)
            cin = "0" if ks == 0 else vr(ACC, 16)
            a(f"v_mfma_f32_32x32x16_bf16 {vr(ACC,16)}, {vr(f+4,4)}, {vr(f,4)}, {cin}")
            if i + 4 < 8:
                rd(ks + 4)
    ts_markA(a, 2)
    ts_markS(a, 1)
    a(f"""
    s_and_b32 s41, s3, 1
    s_lshl_b32 s6, s41, 11
    s_add_u32 s6, s6, {QX_L}
    v_add_u32 v2, s6, v4
    v_mov_b32 v{VS}, {SYNC_L}
    v_mov_b32 v{V1}, 1
    s_lshl_b32 s6, s3, 2
    v_add_u32 v202, s6, v{VS}
    v_xor_b32 v203, 8, v202
    s_lshl_b32 s6, s41, 2
    v_add_u32 v204, s6, v{VS}
    v_mov_b32 v205, 2
    """)
    for i in range(8):
        a(f"v_cvt_pk_bf16_f32 v{Q+i}, v{ACC+2*i}, v{ACC+2*i+1}")
    a(f"v_mul_f32 v5, v{ACC}, v{ACC}\nv_mul_f32 v6, v{ACC+8}, v{ACC+8}")
    for i in range(1, 8):
        a(f"v_fmac_f32 v5, v{ACC+i}, v{ACC+i}\nv_fmac_f32 v6, v{ACC+8+i}, v{ACC+8+i}")
    a(f"""
    v_mov_b32 v7, v5
    v_mov_b32 v3, v6
    s_nop 1
    v_permlane32_swap_b32 v5, v7
    v_permlane32_swap_b32 v6, v3
    s_nop 1
    v_add_f32 v5, v5, v7
    v_add_f32 v6, v6, v3
    v_max_u32 v5, v5, v6
    v_mov_b32 v7, v5
    s_nop 1
    v_permlane16_swap_b32 v5, v7
    s_nop 1
    v_max_u32 v206, v5, v7
    """)
    for sh in (8, 4, 2, 1):
        a(f"s_nop 1\nv_max_u32_dpp v206, v206, v206 row_ror:{sh} row_mask:0xf bank_mask:0xf")
    a(f"""
    ds_write_b32 v202, v206 offset:{SY_QN}
    s_cmp_lg_u32 s42, 0
    s_cbranch_scc1 A_qx1
    ds_write_b128 v2, {vr(Q,4)}
    ds_write_b128 v2, {vr(Q+4,4)} offset:1024
    ds_write_b32 v204, v{V1} offset:{SY_QX}
    """)
    lds_wait_ge(a, 204, SY_QX, 3, 6, 2)
    a(f"""
    ds_read_b128 {vr(Q+8,4)}, v2
    ds_read_b128 {vr(Q+12,4)}, v2 offset:1024
    s_branch A_qx2
    A_qx1:
    """)
    lds_wait_ge(a, 204, SY_QX, 3, 6, 1)
    a(f"""
    ds_read_b128 {vr(Q+8,4)}, v2
    ds_read_b128 {vr(Q+12,4)}, v2 offset:1024
    ds_write_b128 v2, {vr(Q,4)}
    ds_write_b128 v2, {vr(Q+4,4)} offset:1024
    ds_write_b32 v204, v205 offset:{SY_QX}
    A_qx2:
    ds_read_b32 v207, v203 offset:{SY_QN}
    """)
    ts_markS(a, 2)
    for i in range(0, 64, 2):
        a(f"v_mov_b64 {vr(O+i,2)}, 0")
    a(f"""
    v_lshrrev_b32 v2, 5, v1
    v_mul_u32_u24 v2, 288, v2
    v_and_b32 v3, 31, v1
    v_min_u32 v5, 16, v3
    v_lshl_add_u32 v5, v5, 4, v2
    v_and_b32 v3, 27, v3
    v_cmp_lt_u32 vcc, 16, v3
    v_mov_b32 v3, 0x40000000
    v_mov_b32 v6, 0xdddd
    v_cndmask_b32 v5, v5, v3, vcc
    v_lshrrev_b32 v2, 1, v1
    v_and_b32 v3, 1, v1
    v_lshlrev_b32 v3, 4, v3
    v_lshl_add_u32 v208, v2, 7, v3
    v_lshlrev_b32 v7, 2, v1
    s_lshl_b32 s7, s4, 1
    s_add_u32 s7, s7, s41
    s_lshl_b32 s7, s7, 5
    s_lshl_b32 s6, s5, 2
    s_add_u32 s7, s7, s6
    s_lshl_b32 s6, s42, 1
    s_add_u32 s7, s7, s6
    s_lshl_b32 s7, s7, 10
    s_mov_b32 s44, 0
    s_mov_b32 s45, 0x55555555
    s_lshl_b32 s48, s42, 11
    s_lshl_b32 s49, s42, 8
    s_mul_i32 s6, s42, {16*KVREC}
    s_add_u32 s6, s6, {KVF}
    s_waitcnt lgkmcnt(0)
    v_max_u32 v206, v206, v207
    """)
    wsrd(a, 12, "s6", 16*KVREC)
    wsrd(a, 20, KN, KN_SZ)
    wsrd(a, 28, FL, FL_SZ)
    ts_markS(a, 3)
    lds_wait_ge(a, VS, SY_NONCE, 209, 46, 1, sleep=1)
    ts_markS(a, 4)
    ts_markA(a, 3)
    refills = []
    def pick():
        rf = a.label("A_rf"); bk = a.label("A_bk")
        refills.append((rf, bk))
        a(f"""
        s_and_b32 s6, s44, s45
        s_cbranch_scc0 {rf}
        {bk}:
        s_ff1_i32_b32 s6, s6
        s_bitset0_b32 s45, s6
        s_mul_i32 s43, s6, {KVREC//2}
        """)
    def loadkv(b, odd):
        a(f"""
        buffer_load_dwordx4 {vr(KV+12*b,4)}, v4, s[12:15], s43 offen offset:{1024*odd} {SC}
        buffer_load_dwordx4 {vr(KV+12*b+4,4)}, v5, s[12:15], s43 offen offset:{2048+1152*odd} {SC}
        buffer_load_dwordx4 {vr(KV+12*b+8,4)}, v5, s[12:15], s43 offen offset:{2048+1152*odd+576} {SC}
        """)
    pick(); ts_markS(a, 5); loadkv(0, 0); loadkv(1, 1); pick(); ts_markS(a, 6); loadkv(2, 0)
    a(f"""
    s_setprio 1
    s_mov_b32 s52, 8
    s_mov_b32 s53, 1
    s_waitcnt vmcnt(6)
    """)
    ts_markA(a, 4)
    ts_markS(a, 7)
    a(f"""
    v_mfma_f32_32x32x16_bf16 {vr(S,16)}, {vr(KV,4)}, {vr(Q,4)}, 0
    s_nop 10
    """)
    def step(i, pv=True, qk=True, ex=True, first=False):
        t = i % 4
        m = {}
        if qk:
            kb = ((i+1)//4) % 4
            s = ""
            if (i+1) % 4 == 0:
                s = "s_waitcnt vmcnt(6)\n"
            m[POS[0]] = s + f"v_mfma_f32_32x32x16_bf16 {vr(S+16*((i+1)%4),16)}, {vr(KV+12*kb,4)}, {vr(Q+4*((i+1)%4),4)}, 0"
        if pv:
            vb = ((i-1)//4) % 4
            tp = (i-1) % 4
            m[POS[1]] = f"v_smfmac_f32_32x32x32_bf16 {vr(O+16*tp,16)}, {vr(KV+12*vb+4,4)}, {vr(S+16*tp,8)}, v6"
            m[POS[2]] = f"v_smfmac_f32_32x32x32_bf16 {vr(O+16*tp,16)}, {vr(KV+12*vb+8,4)}, {vr(S+16*tp+8,8)}, v6"
        for e in range(16):
            if e in m:
                a(m[e])
            if ex:
                a(f"v_exp_f32 v{S+16*t+e}, v{S+16*t+e}")
            if e == 10 and ex:
                kt = i//4 + 3
                if t == 0 and kt % 2 == 0:
                    pick()
                if t == 1:
                    loadkv(kt % 4, kt % 2)
    step(0, pv=False)
    a("s_branch ATT_mid\n.p2align 6\nATT_loop:")
    step(16)
    a("ATT_mid:")
    for i in range(1, 16):
        step(i)
    ts_iterA(a, 52)
    a("s_sub_u32 s52, s52, 1\ns_cmp_lg_u32 s52, 0\ns_cbranch_scc1 ATT_loop")
    step(16, qk=False, ex=False)
    ts_markA(a, 5)
    ts_markE(a, 0)
    a(f"""
    s_waitcnt vmcnt(0)
    v_mov_b32 v3, v207
    s_mul_i32 s6, s3, 4608
    s_add_u32 s6, s6, {RED_L}
    v_permlane32_swap_b32 v207, v3
    v_add_u32 v2, s6, v4
    v_lshrrev_b32 v216, 2, v4
    v_max_u32 v207, v207, v3
    v_mov_b32 v3, v207
    v_add_u32 v216, s6, v216
    s_xor_b32 s6, s3, 2
    v_permlane16_swap_b32 v207, v3
    s_mul_i32 s6, s6, 4608
    s_add_u32 s6, s6, {RED_L}
    v_max_u32 v207, v207, v3
    v_add_u32 v217, s6, v4
    v_lshrrev_b32 v218, 2, v4
    v_max_u32_dpp v207, v207, v207 row_ror:8 row_mask:0xf bank_mask:0xf
    v_add_u32 v218, s6, v218
    v_mov_b32 v3, {f2u(T_BOUND*T_BOUND):#x}
    v_max_u32_dpp v207, v207, v207 row_ror:4 row_mask:0xf bank_mask:0xf
    s_nop 1
    v_max_u32_dpp v207, v207, v207 row_ror:2 row_mask:0xf bank_mask:0xf
    s_nop 1
    v_max_u32_dpp v207, v207, v207 row_ror:1 row_mask:0xf bank_mask:0xf
    v_mul_f32 v207, v206, v207
    v_cmp_nle_f32 vcc, v207, v3
    """)
    ts_markE(a, 1)
    lds_wait_ge(a, VS, SY_F, 221, 6, 72)
    a(f"""
    s_cmp_lg_u64 vcc, 0
    s_cselect_b32 s54, 2, 1
    ATT_epi:
    v_mov_b32 v219, s54
    """)
    for j, t in enumerate([2, 3]):
        a(f"ds_write_b128 v2, {vr(O+16*t,4)} offset:{2304*j}")
        a(f"ds_write_b128 v2, {vr(O+16*t+4,4)} offset:{2304*j+1024}")
        a(f"ds_write_b32 v216, v{O+16*t+8} offset:{2304*j+2048}")
    a(f"ds_write_b32 v202, v219 offset:{SY_PAIR}")
    wsrd(a, 20, OF, OF_SZ)
    ts_markE(a, 2)
    lds_wait_ge(a, 203, SY_PAIR, 221, 6, "s53")
    ts_markE(a, 3)
    a(f"""
    s_max_u32 s6, s6, s54
    s_cmp_eq_u32 s6, 2
    s_cbranch_scc1 ATT_slow
    s_cmp_gt_u32 s6, s54
    s_cbranch_scc1 ATT_slow
    """)
    R = S
    for j in range(2):
        a(f"ds_read_b32 v{R+12*j+8}, v218 offset:{2304*j+2048}")
    for j in range(2):
        a(f"ds_read_b128 {vr(R+12*j,4)}, v217 offset:{2304*j}")
        a(f"ds_read_b128 {vr(R+12*j+4,4)}, v217 offset:{2304*j+1024}")
    a("s_waitcnt lgkmcnt(4)")
    for j in range(2):
        a(f"v_add_f32 v{R+12*j+8}, v{R+12*j+8}, v{O+16*j+8}")
    for j in range(2):
        a(f"v_rcp_f32 v{R+12*j+8}, v{R+12*j+8}")
    for j in range(2):
        a(f"s_waitcnt lgkmcnt({2 - 2*j})")
        for i in range(8):
            a(f"v_add_f32 v{R+12*j+i}, v{R+12*j+i}, v{O+16*j+i}")
        for i in range(8):
            a(f"v_mul_f32 v{R+12*j+i}, v{R+12*j+i}, v{R+12*j+8}")
        for i in range(4):
            a(f"v_cvt_pk_bf16_f32 v{R+32+4*j+i}, v{R+12*j+2*i}, v{R+12*j+2*i+1}")
        a(f"buffer_store_dwordx4 {vr(R+32+4*j,4)}, v4, s[20:23], s7 offen offset:{1024*j} {SC}")
    ts_markE(a, 4)
    a("s_waitcnt vmcnt(0)")
    ts_markE(a, 5)
    lds_arrive(a, VS, V1, SY_A)
    ts_markA(a, 6)
    a("s_cmp_lg_u32 s3, 0\ns_cbranch_scc1 TAIL")
    lds_wait_ge(a, VS, SY_A, 13, 6, 4)
    publish(a, 28, 2, 13, 14, 46, 6)
    ts_markE(a, 6)
    poll_group(a, 28, 2, 13, 14, 46, 6, 47, 2)
    ts_markA(a, 7)
    ts_markE(a, 7)
    a("s_branch TAIL")
    for rf, bk in refills:
        lp = a.label("A_rp"); jk = a.label("A_jk")
        a(f"""
        {rf}:
        s_cmp_eq_u32 s45, 0
        s_cbranch_scc1 {jk}
        s_mov_b32 s47, {SPIN}
        s_mov_b32 exec_hi, 0
        {lp}:
        buffer_load_dwordx4 v[212:215], v208, s[28:31], s48 offen {SC}
        s_waitcnt vmcnt(0)
        v_xor_b32 v212, s46, v212
        v_xor_b32 v213, s46, v213
        v_xor_b32 v214, s46, v214
        v_xor_b32 v215, s46, v215
        v_or_b32 v212, v212, v213
        v_or3_b32 v212, v212, v214, v215
        v_cmp_eq_u32 vcc, 0, v212
        s_sub_u32 s47, s47, 1
        s_cbranch_scc1 {jk}
        s_lshr_b32 s6, vcc_lo, 1
        s_and_b32 s44, s6, vcc_lo
        s_and_b32 s6, s44, s45
        s_mov_b64 exec, -1
        s_cbranch_scc1 {bk}
        s_mov_b32 exec_hi, 0
        s_sleep 4
        s_branch {lp}
        {jk}:
        s_mov_b64 exec, -1
        buffer_load_dword v207, v7, s[20:23], s49 offen {SC}
        s_mov_b32 s6, 1
        s_branch {bk}
        """)
    a("ATT_slow:")
    wsrd(a, 12, KVF, KVF_SZ)
    for i in range(0, 64, 2):
        a(f"v_mov_b64 {vr(O+i,2)}, 0")
    C = S + 16
    for t in range(4):
        l1 = a.label("ATT_s1"); l2 = a.label("ATT_s2")
        a(f"""
        s_mov_b32 s43, 0
        v_mov_b32 v220, 0xff800000
        {l1}:
        buffer_load_dwordx4 {vr(KV,4)}, v4, s[12:15], s43 offen {SC}
        buffer_load_dwordx4 {vr(KV+12,4)}, v4, s[12:15], s43 offen offset:1024 {SC}
        s_add_u32 s43, s43, {KVREC}
        s_waitcnt vmcnt(0)
        v_mfma_f32_32x32x16_bf16 {vr(S,16)}, {vr(KV,4)}, {vr(Q+4*t,4)}, 0
        v_mfma_f32_32x32x16_bf16 {vr(S+16,16)}, {vr(KV+12,4)}, {vr(Q+4*t,4)}, 0
        s_nop 15
        """)
        for i in range(16):
            a(f"v_max3_f32 v220, v{S+2*i}, v{S+2*i+1}, v220")
        a(f"""
        s_cmp_lt_u32 s43, {KVF_SZ}
        s_cbranch_scc1 {l1}
        v_mov_b32 v3, v220
        s_nop 1
        v_permlane32_swap_b32 v220, v3
        s_nop 1
        v_max_f32 v220, v220, v3
        """)
        for i in range(16):
            a(f"v_sub_f32 v{C+i}, 0, v220")
        a(f"""
        s_mul_i32 s43, s42, {16*KVREC}
        s_mov_b32 s52, 16
        {l2}:
        """)
        loadkv(0, 0); loadkv(1, 1)
        a(f"s_add_u32 s43, s43, {KVREC}\ns_waitcnt vmcnt(0)")
        for b in range(2):
            a(f"""
            v_mfma_f32_32x32x16_bf16 {vr(S,16)}, {vr(KV+12*b,4)}, {vr(Q+4*t,4)}, {vr(C,16)}
            s_nop 15
            """)
            for i in range(16):
                a(f"v_exp_f32 v{S+i}, v{S+i}")
            a(f"""
            s_nop 1
            v_smfmac_f32_32x32x32_bf16 {vr(O+16*t,16)}, {vr(KV+12*b+4,4)}, {vr(S,8)}, v6
            v_smfmac_f32_32x32x32_bf16 {vr(O+16*t,16)}, {vr(KV+12*b+8,4)}, {vr(S+8,8)}, v6
            """)
        a(f"""
        s_sub_u32 s52, s52, 1
        s_cmp_lg_u32 s52, 0
        s_cbranch_scc1 {l2}
        """)
    a("s_mov_b32 s53, 3\ns_mov_b32 s54, 3\ns_nop 10\ns_branch ATT_epi")

def gen_F(a):
    ACC, FA, FB, T = 24, 120, 140, 160
    a(f"""
    s_sub_u32 s33, s3, 4
    v_lshlrev_b32 v2, 2, v1
    v_add_u32 v2, {SYNC_L}, v2
    v_mov_b32 v3, 0
    s_mov_b64 exec, 0xffff
    ds_write_b32 v2, v3
    s_mov_b64 exec, -1
    v_lshrrev_b32 v2, 3, v1
    v_and_b32 v3, 7, v1
    v_bfe_u32 v6, v2, 1, 1
    v_lshlrev_b32 v6, 2, v6
    v_xor_b32 v6, v6, v3
    v_lshlrev_b32 v6, 4, v6
    v_lshl_add_u32 v23, v2, 10, v6
    s_lshl_b32 s6, s5, 7
    v_add_u32 v23, s6, v23
    s_mul_i32 s44, s5, 352
    s_movk_i32 s45, 2979
    s_movk_i32 s46, 2752
    """)
    a(f"""
    s_waitcnt lgkmcnt(0)
    s_cmp_lg_u32 s33, 1
    s_cbranch_scc1 F_nonon
    s_cmp_lg_u32 s2, 0
    s_cbranch_scc1 F_notouch
    s_memrealtime s[34:35]
    """)
    srd(a, 8, P_DBG, P_DBG+1, 256)
    a(f"""
    s_waitcnt lgkmcnt(0)
    s_or_b32 s34, s34, 1
    v_mov_b32 v2, s34
    v_mov_b32 v3, 0
    s_mov_b64 exec, 1
    buffer_store_dword v2, v3, s[8:11], 0 offen {SC}
    s_mov_b64 exec, -1
    s_branch F_notouch
    F_nonon:
    s_cmp_lg_u32 s33, 2
    s_cbranch_scc1 F_notouch
    v_lshlrev_b32 v2, 21, v1
    v_add_u32 v2, 0x40000, v2
    v_mov_b32 v3, 0
    s_lshl_b32 s6, s4, 16
    """)
    wsrd(a, 8, 0x200000, 0xA00000)
    a(f"buffer_load_dword v4, v2, s[8:11], 0 offen {SC}")
    srd(a, 8, P_OUT, P_OUT+1, 2048*1024)
    a(f"buffer_load_dword v4, v3, s[8:11], s6 offen {SC}")
    srd(a, 8, P_WD, P_WD+1, 1376*1024)
    a("buffer_load_dword v4, v3, s[8:11], 0 offen")
    srd(a, 8, P_WO, P_WO+1, 524288)
    a("buffer_load_dword v4, v3, s[8:11], 0 offen")
    srd(a, 8, P_WG, P_WG+1, 512*2752)
    a("buffer_load_dword v4, v3, s[8:11], 0 offen")
    srd(a, 8, P_WU, P_WU+1, 512*2752)
    a("buffer_load_dword v4, v3, s[8:11], 0 offen")
    a("F_notouch:")
    for m in range(6):
        a(f"s_add_u32 s6, s33, {4*m}")
        if m == 5:
            a("s_cmp_ge_u32 s33, 2\ns_cselect_b32 s6, s33, s6")
        a(f"""
        s_cmp_ge_u32 s6, 11
        s_cselect_b32 s42, 11, 0
        s_cselect_b32 s43, {UPOFF}, 0
        s_sub_u32 s6, s6, s42
        s_lshl_b32 s42, s6, 10
        s_add_u32 s43, s43, s42
        s_add_u32 s{34+m}, s43, {R_L}
        s_lshl_b32 s6, s6, 6
        v_add_u32 v2, s6, v1
        v_mul_lo_u32 v3, v2, s45
        v_lshrrev_b32 v3, 16, v3
        v_mul_u32_u24 v5, 22, v3
        v_sub_u32 v2, v2, v5
        v_mul_lo_u32 v3, v3, s46
        v_lshl_add_u32 v2, v2, 4, v3
        v_add_u32 v{8+m}, s44, v2
        """)
    a(f"""
    v_and_b32 v2, 31, v1
    v_lshrrev_b32 v3, 5, v1
    v_bfe_u32 v5, v2, 1, 3
    v_lshlrev_b32 v2, 7, v2
    """)
    for j in range(4):
        a(f"v_or_b32 v6, {2*j}, v3\nv_xor_b32 v6, v6, v5\nv_lshl_add_u32 v{14+j}, v6, 4, v2")
    a(f"""
    v_bfe_u32 v2, v1, 2, 2
    v_lshl_add_u32 v2, v3, 3, v2
    v_mul_u32_u24 v2, 352, v2
    v_bfe_u32 v3, v1, 4, 1
    v_mul_u32_u24 v3, {UPOFF}, v3
    v_add_u32 v2, v2, v3
    v_and_b32 v3, 3, v1
    v_lshl_add_u32 v2, v3, 3, v2
    s_lshl_b32 s6, s33, 5
    s_add_u32 s6, s6, {R_L}
    v_add_u32 v18, s6, v2
    v_add_u32 v19, {2*STG}, v18
    v_mov_b32 v20, {SYNC_L}
    v_mov_b32 v21, 1
    s_mov_b32 s47, 0
    s_mov_b32 s50, 0
    """)
    WSZ = 512*2752
    srd(a, 12, P_WG, P_WG+1, WSZ)
    srd(a, 16, P_WU, P_WU+1, WSZ)
    a(f"s_cmp_eq_u32 s33, 3\ns_cselect_b32 s42, s{P_WU}, s{P_WG}\ns_cselect_b32 s43, s{P_WU+1}, s{P_WG+1}")
    srd(a, 20, 42, 43, WSZ)
    a(f"s_cmp_ge_u32 s33, 2\ns_cselect_b32 s42, s{P_WG}, s{P_WU}\ns_cselect_b32 s43, s{P_WG+1}, s{P_WU+1}")
    srd(a, 24, 42, 43, WSZ)
    SRDS = [12, 12, 20, 16, 16, 24]
    ts_markF(a, 0)
    def dma(m, slot):
        a(f"s_add_u32 m0, s{34+m}, {slot*STG}\ns_nop 0\nbuffer_load_dwordx4 v{8+m}, {sr(SRDS[m],4)}, s47 offen lds")
    def dma_stage(slot, vm=None):
        for m in range(6):
            dma(m, slot)
            if vm: vm.issue("st")
        a(f"s_add_u32 s47, s47, {32*2752}")
    def zero_acc():
        for i in range(0, 96, 2):
            a(f"v_mov_b64 {vr(ACC+i,2)}, 0")
        for i in range(0, 20, 2):
            a(f"v_mov_b64 {vr(FB+i,2)}, 0")
    a("s_cmp_eq_u32 s33, 0\ns_cbranch_scc1 F_kv")
    a("s_barrier")
    zero_acc()
    a("s_barrier")
    a("s_barrier")
    dma_stage(0)
    a("s_barrier")
    a("s_branch F_join")
    a("F_kv:")
    KT = 200
    a(f"""
    s_and_b32 s42, s5, 3
    s_lshl_b32 s6, s42, 4
    v_and_b32 v2, 15, v1
    v_add_u32 v{KT}, s6, v2
    v_lshrrev_b32 v3, 4, v1
    v_bfe_u32 v5, v{KT}, 1, 3
    v_xor_b32 v5, v5, v3
    v_lshlrev_b32 v5, 4, v5
    v_lshl_add_u32 v{KT+1}, v{KT}, 7, v5
    v_xor_b32 v{KT+2}, 64, v{KT+1}
    v_bfe_u32 v5, v1, 2, 2
    v_lshl_add_u32 v5, v3, 3, v5
    v_lshlrev_b32 v5, 5, v5
    v_and_b32 v6, 3, v1
    v_lshl_add_u32 v5, v6, 3, v5
    v_add_u32 v{KT+3}, {WKV_L}, v5
    v_lshlrev_b32 v{KT+4}, 4, v3
    v_add_u32 v{KT+4}, {GW_L}, v{KT+4}
    s_cmp_ge_u32 s5, 4
    s_cbranch_scc1 F_v
    """)
    for isv in (0, 1):
        if isv:
            a("F_v:")
        vm = Counter(a, "vmcnt", 63)
        lg = Counter(a, "lgkmcnt", 15)
        FRK = 24
        D0, D1 = KT + 8, KT + 12
        def rdk(s):
            f = FRK + 12*(s % 4)
            a(f"ds_read_b128 {vr(f,4)}, v{KT+1+(s&1)} offset:{(s>>1)*8192}"); lg.issue(s)
            a(f"ds_read_b64_tr_b16 {vr(f+4,2)}, v{KT+3} offset:{1024*s}"); lg.issue(s)
            a(f"ds_read_b64_tr_b16 {vr(f+6,2)}, v{KT+3} offset:{1024*s+128}"); lg.issue(s)
            if not isv:
                a(f"ds_read_b128 {vr(f+8,4)}, v{KT+4} offset:{64*s}"); lg.issue(s)
        for hb in range(2):
            a("s_barrier")
            for i in range(3):
                rdk(8*hb + i)
            for i in range(8):
                s = 8*hb + i
                lg.wait(s)
                if i + 3 < 8:
                    rdk(s + 3)
                f = FRK + 12*(s % 4)
                c0 = "0" if s == 0 else vr(D0, 4)
                c1 = "0" if s == 0 else vr(D1, 4)
                if isv:
                    a(f"v_mfma_f32_16x16x32_bf16 {vr(D0,4)}, {vr(f,4)}, {vr(f+4,4)}, {c0}")
                else:
                    a(f"v_mfma_f32_16x16x32_bf16 {vr(D0,4)}, {vr(f+4,4)}, {vr(f,4)}, {c0}")
                    a(f"v_mfma_f32_16x16x32_bf16 {vr(D1,4)}, {vr(f+8,4)}, {vr(f,4)}, {c1}")
        P = KT + 16
        if isv:
            a(f"""
            s_mul_i32 s6, s4, {KVREC}
            s_mul_i32 s43, s42, 576
            s_add_u32 s6, s6, s43
            v_lshrrev_b32 v5, 5, v1
            v_mul_u32_u24 v5, 288, v5
            v_lshl_add_u32 v5, v2, 4, v5
            v_and_b32 v6, 1, v3
            v_lshl_add_u32 v5, v6, 3, v5
            """)
            wsrd(a, 28, KVF, KVF_SZ)
            a(f"""
            v_cvt_pk_bf16_f32 v{P}, v{D0}, v{D0+1}
            v_cvt_pk_bf16_f32 v{P+1}, v{D0+2}, v{D0+3}
            buffer_store_dwordx2 {vr(P,2)}, v5, s[28:31], s6 offen offset:2048 {SC}
            v_mul_u32_u24 v6, 288, v1
            v_mov_b32 v{D1}, 0x3f803f80
            v_mov_b32 v{D1+1}, 0x3f803f80
            v_mov_b32 v{D1+2}, 0x3f803f80
            v_mov_b32 v{D1+3}, 0x3f803f80
            s_mov_b64 exec, 3
            buffer_store_dwordx4 {vr(D1,4)}, v6, s[28:31], s6 offen offset:{2048+256} {SC}
            s_mov_b64 exec, -1
            """); vm.issue("kv"); vm.issue("kv")
        else:
            a(f"""
            s_mul_i32 s6, s4, {KVREC}
            v_lshrrev_b32 v5, 5, v{KT}
            v_lshlrev_b32 v5, 10, v5
            v_and_b32 v6, 31, v{KT}
            v_lshl_add_u32 v5, v6, 4, v5
            v_and_b32 v6, 1, v3
            v_lshl_add_u32 v5, v6, 9, v5
            v_lshrrev_b32 v6, 1, v3
            v_lshl_add_u32 v5, v6, 3, v5
            s_mov_b32 s43, {f2u(C_K):#x}
            """)
            wsrd(a, 28, KVF, KVF_SZ)
            a(f"""
            v_mul_f32 v{D0}, s43, v{D0}
            v_mul_f32 v{D0+1}, s43, v{D0+1}
            v_mul_f32 v{D0+2}, s43, v{D0+2}
            v_mul_f32 v{D0+3}, s43, v{D0+3}
            v_cvt_pk_bf16_f32 v{P}, v{D0}, v{D0+1}
            v_cvt_pk_bf16_f32 v{P+1}, v{D0+2}, v{D0+3}
            buffer_store_dwordx2 {vr(P,2)}, v5, s[28:31], s6 offen {SC}
            v_mul_f32 v{D1}, {f2u(-LOG2E):#x}, v{D1}
            v_exp_f32 v{D1}, v{D1}
            v_mul_f32 v6, v{D0}, v{D0}
            v_add_f32 v{D1}, 1.0, v{D1}
            v_fmac_f32 v6, v{D0+1}, v{D0+1}
            v_rcp_f32 v{D1}, v{D1}
            v_fmac_f32 v6, v{D0+2}, v{D0+2}
            v_fmac_f32 v6, v{D0+3}, v{D0+3}
            v_mov_b32 v5, v6
            s_nop 1
            v_permlane32_swap_b32 v6, v5
            s_nop 1
            v_add_f32 v6, v6, v5
            v_mov_b32 v5, v6
            s_nop 1
            v_permlane16_swap_b32 v6, v5
            s_nop 1
            v_add_f32 v6, v6, v5
            """); vm.issue("kv")
            for sh in (8, 4, 2, 1):
                a(f"s_nop 1\nv_max_u32_dpp v6, v6, v6 row_ror:{sh} row_mask:0xf bank_mask:0xf")
            wsrd(a, 28, GB, GB_SZ + 0x200)
            a(f"""
            s_lshl_b32 s6, s4, 8
            v_lshlrev_b32 v5, 2, v{KT}
            s_mov_b64 exec, 0xffff
            buffer_store_dword v{D1}, v5, s[28:31], s6 offen {SC}
            s_lshl_b32 s6, s4, 2
            s_add_u32 s6, s6, s42
            s_lshl_b32 s6, s6, 2
            s_add_u32 s6, s6, {KN - GB}
            v_mov_b32 v5, 0
            s_mov_b64 exec, 1
            buffer_store_dword v6, v5, s[28:31], s6 offen {SC}
            s_mov_b64 exec, -1
            """); vm.issue("kv"); vm.issue("kv")
        ts_markF(a, 1)
        srd(a, 28, P_DBG, P_DBG+1, 256)
        a(f"v_mov_b32 v5, 0\nbuffer_load_dword v{KT+20}, v5, s[28:31], 0 offen {SC}"); vm.issue("kv")
        a("s_barrier")
        dma_stage(0, vm)
        zero_acc()
        vm.wait("kv")
        ok = a.label("F_nok")
        a(f"v_readfirstlane_b32 s54, v{KT+20}\ns_cmp_lg_u32 s54, 0\ns_cbranch_scc1 {ok}")
        get_nonce(a, 28, 5, 6, 54, 55)
        a(f"{ok}:")
        wsrd(a, 28, FL, FL_SZ)
        publish(a, 28, 0, 5, 6, 54, 6)
        a(f"ds_write_b32 v20, v5 offset:{SY_NONCE}")
        ts_markF(a, 2)
        a("s_barrier")
        if not isv:
            a("s_branch F_join")
    a("F_join:")
    a("s_barrier")
    dma_stage(1)
    a("s_barrier")
    dma_stage(2)
    a("s_barrier")
    def reads(F, q, kk):
        j = (2*q + kk) & 3
        xo = (q >> 1)*8192
        vb = 18 + (q >> 1)
        a(f"ds_read_b128 {vr(F,4)}, v{14+j} offset:{xo}")
        a(f"ds_read_b128 {vr(F+4,4)}, v{14+j} offset:{xo+4096}")
        for u in range(3):
            off = (q & 1)*STG + kk*16*352 + u*128
            a(f"ds_read_b64_tr_b16 {vr(F+8+4*u,2)}, v{vb} offset:{off}")
            a(f"ds_read_b64_tr_b16 {vr(F+10+4*u,2)}, v{vb} offset:{off+1408}")
    def mfma1(F, k):
        u, rt = k >> 1, k & 1
        A_ = ACC + 16*(2*u+rt)
        a(f"v_mfma_f32_32x32x16_bf16 {vr(A_,16)}, {vr(F+8+4*u,4)}, {vr(F+4*rt,4)}, {vr(A_,16)}")
    ts_markF(a, 3)
    a("s_setprio 2\ns_waitcnt vmcnt(12)")
    lds_arrive(a, 20, 21, SY_F)
    a("s_mov_b32 s50, 4\ns_mov_b32 s51, 4")
    lds_wait_ge(a, 20, SY_F, 22, 6, "s50")
    a("s_setprio 0\n.p2align 6\nG1_loop:")
    for q in range(4):
        ws = (q + 3) % 4
        reads(FA, q, 0)
        for k in range(6):
            mfma1(FB, k)
            if k in (0, 2, 4):
                dma(k >> 1, ws)
        reads(FB, q, 1)
        a("s_waitcnt vmcnt(9)")
        lds_arrive(a, 20, 21, SY_F)
        a("s_add_u32 s50, s50, 4\ns_waitcnt lgkmcnt(9)")
        for k in range(6):
            mfma1(FA, k)
            if k in (0, 2, 4):
                dma(3 + (k >> 1), ws)
            if k == 4:
                a(f"ds_read_b32 v22, v20 offset:{SY_F}")
        ok = a.label("G1_ok")
        a(f"""
        s_add_u32 s47, s47, {32*2752}
        s_setprio 2
        s_waitcnt lgkmcnt(0)
        v_readfirstlane_b32 s6, v22
        """)
        if q == 3:
            for j in range(4):
                a(f"v_add_u32 v{14+j}, 16384, v{14+j}")
        a(f"s_cmp_ge_u32 s6, s50\ns_cbranch_scc1 {ok}")
        a("s_setprio 0")
        lds_wait_ge(a, 20, SY_F, 22, 6, "s50")
        a(f"{ok}:\ns_setprio 0")
    ts_iter(a, 51)
    a("s_sub_u32 s51, s51, 1\ns_cmp_lg_u32 s51, 0\ns_cbranch_scc1 G1_loop")
    for k in range(6):
        mfma1(FB, k)
    a("s_setprio 2")
    ts_markF(a, 4)
    c1 = -2.0*math.sqrt(2.0/math.pi)*LOG2E
    c2 = c1*0.044715
    a(f"""
    v_mov_b32 v2, {f2u(c1):#x}
    v_mov_b32 v3, {f2u(c1):#x}
    v_mov_b32 v4, {f2u(c2):#x}
    v_mov_b32 v5, {f2u(c2):#x}
    v_mov_b32 v6, 1.0
    v_mov_b32 v7, 1.0
    v_lshlrev_b32 v8, 4, v1
    s_mul_i32 s44, s5, 11
    s_add_u32 s44, s44, s33
    s_lshl_b32 s45, s4, 11
    """)
    wsrd(a, 12, HF, HF_SZ)
    for u in range(3):
        skip = a.label("G1_skip")
        if u == 2:
            a(f"s_cmp_eq_u32 s33, 3\ns_cbranch_scc1 {skip}")
        a(f"""
        s_cmp_ge_u32 s44, 86
        s_cbranch_scc1 {skip}
        s_lshl_b32 s46, s44, 16
        s_add_u32 s46, s46, s45
        """)
        for rt in range(2):
            A_ = ACC + 16*(2*u+rt)
            t = T + 16*rt
            for p in range(4):
                a(f"v_pk_mul_f32 {vr(t+2*p,2)}, {vr(A_+2*p,2)}, {vr(A_+2*p,2)}")
            for p in range(4):
                a(f"v_pk_fma_f32 {vr(t+2*p,2)}, {vr(t+2*p,2)}, v[4:5], v[2:3]")
            for p in range(4):
                a(f"v_pk_mul_f32 {vr(t+2*p,2)}, {vr(t+2*p,2)}, {vr(A_+2*p,2)}")
            for i in range(8):
                a(f"v_exp_f32 v{t+i}, v{t+i}")
            for p in range(4):
                a(f"v_pk_mul_f32 {vr(A_+2*p,2)}, {vr(A_+2*p,2)}, {vr(A_+8+2*p,2)}")
            for p in range(4):
                a(f"v_pk_add_f32 {vr(t+2*p,2)}, {vr(t+2*p,2)}, v[6:7]")
            for i in range(8):
                a(f"v_rcp_f32 v{t+i}, v{t+i}")
            a("s_nop 0")
            for p in range(4):
                a(f"v_pk_mul_f32 {vr(A_+2*p,2)}, {vr(A_+2*p,2)}, {vr(t+2*p,2)}")
            for p in range(4):
                a(f"v_cvt_pk_bf16_f32 v{t+8+p}, v{A_+2*p}, v{A_+2*p+1}")
            a(f"buffer_store_dwordx4 {vr(t+8,4)}, v8, s[12:15], s46 offen offset:{1024*rt} {SC}")
        a(f"{skip}:\ns_add_u32 s44, s44, 4")
    GACC, BR, GFA = 24, 88, 152
    a(f"""
    s_lshl_b32 s7, s33, 14
    v_add_u32 v5, s7, v23
    s_lshl_b32 s6, s33, 16
    s_add_u32 s6, s6, s45
    v_add_u32 v6, s6, v8
    v_bfe_u32 v2, v1, 2, 2
    v_lshrrev_b32 v3, 5, v1
    v_lshl_add_u32 v3, v3, 2, v2
    v_lshlrev_b32 v3, 7, v3
    v_bfe_u32 v2, v1, 3, 1
    v_lshl_add_u32 v3, v2, 6, v3
    v_bfe_u32 v2, v1, 4, 1
    v_lshl_add_u32 v3, v2, 5, v3
    v_and_b32 v2, 3, v1
    v_lshl_add_u32 v3, v2, 3, v3
    v_add_u32 v9, s7, v3
    v_xor_b32 v10, 64, v9
    s_and_b32 s41, s33, 1
    s_lshl_b32 s42, s4, 1
    s_add_u32 s42, s42, s41
    s_lshl_b32 s43, s42, 7
    v_and_b32 v11, 31, v1
    v_lshlrev_b32 v11, 2, v11
    s_lshl_b32 s46, s33, 17
    """)
    srd(a, 8, P_WD, P_WD+1, 1376*1024)
    srd(a, 16, P_WO, P_WO+1, 524288)
    wsrd(a, 24, GB, GB_SZ)
    a("s_waitcnt vmcnt(0)")
    lds_arrive(a, 20, 21, SY_F)
    a("s_add_u32 s50, s50, 4")
    lds_wait_ge(a, 20, SY_F, 22, 6, "s50")
    ts_markF(a, 5)
    a("s_cmp_lg_u32 s33, 0\ns_cbranch_scc1 G2_nopub")
    publish(a, 28, 1, 13, 14, 54, 6)
    a("G2_nopub:")
    def ldw(i, vm=None):
        for j in range(2):
            a(f"s_add_u32 m0, s7, {(i%8)*2048 + j*1024}\ns_mov_b32 s6, {i*65536 + j*8192}\nbuffer_load_dwordx4 v5, s[8:11], s6 offen lds")
            if vm: vm.issue(i)
    def ldh(i, vm):
        a(f"s_mov_b32 s6, {i*262144}")
        for rt in range(2):
            a(f"buffer_load_dwordx4 {vr(BR+8*(i%8)+4*rt,4)}, v6, s[12:15], s6 offen offset:{1024*rt} {SC}"); vm.issue(i)
    a("s_setprio 0")
    for i in range(7):
        ldw(i)
        if i >= 1:
            a("s_waitcnt vmcnt(2)")
    a("s_cmp_lg_u32 s33, 0\ns_cbranch_scc1 G2_wait")
    poll_group(a, 28, 1, 13, 14, 54, 6, 55, 8)
    a(f"ds_write_b32 v20, v21 offset:{SY_HGO}\ns_branch G2_go\nG2_wait:")
    lds_wait_ge(a, 20, SY_HGO, 22, 6, 1, sleep=4)
    a("G2_go:")
    a("s_waitcnt vmcnt(0)\ns_setprio 0")
    ts_markF(a, 6)
    vm = Counter(a, "vmcnt", 63)
    lg = Counter(a, "lgkmcnt", 15)
    a(f"buffer_load_dword v12, v11, s[24:27], s43 offen {SC}"); vm.issue("g")
    for i in range(7):
        ldh(i, vm)
        if i >= 2:
            vm.wait(i - 2)
    def rd(i):
        F = GFA + 8*(i%2)
        for p in range(2):
            a(f"ds_read_b64_tr_b16 {vr(F+4*p,2)}, v{9+p} offset:{(i%8)*2048}"); lg.issue(i)
            a(f"ds_read_b64_tr_b16 {vr(F+4*p+2,2)}, v{9+p} offset:{(i%8)*2048+1024}"); lg.issue(i)
    NS = 22
    nwo = 0
    rd(0)
    for i in range(NS):
        if i + 1 < NS:
            vm.wait(i + 1)
            rd(i + 1)
        else:
            vm.wait(i)
        lg.wait(i)
        F = GFA + 8*(i%2)
        n = i + 7
        for k in range(4):
            p, rt = k >> 1, k & 1
            A_ = GACC + 16*(rt + 2*p)
            cin = "0" if i == 0 else vr(A_, 16)
            a(f"v_mfma_f32_32x32x16_bf16 {vr(A_,16)}, {vr(F+4*p,4)}, {vr(BR+8*(i%8)+4*rt,4)}, {cin}")
            if n < NS:
                if k < 2:
                    a(f"s_add_u32 m0, s7, {(n%8)*2048 + k*1024}\ns_mov_b32 s6, {n*65536 + k*8192}\nbuffer_load_dwordx4 v5, s[8:11], s6 offen lds"); vm.issue(n)
                else:
                    if k == 2:
                        a(f"s_mov_b32 s6, {n*262144}")
                    a(f"buffer_load_dwordx4 {vr(BR+8*(n%8)+4*(k-2),4)}, v6, s[12:15], s6 offen offset:{1024*(k-2)} {SC}"); vm.issue(n)
            elif k < 3 and nwo < 16:
                a(f"s_add_u32 m0, s7, {WO_L + nwo*1024}\ns_add_u32 s6, s46, {nwo*8192}\nbuffer_load_dwordx4 v23, s[16:19], s6 offen lds"); vm.issue("wo")
                nwo += 1
    assert nwo == 16
    a(f"""
    s_setprio 2
    s_lshl_b32 s6, s41, 7
    s_add_u32 s6, s6, {G_L}
    v_add_u32 v11, s6, v11
    v_add_u32 v13, s7, v8
    ds_write_b32 v11, v12
    s_nop 0
    v_sub_f32 v12, 1.0, v12
    s_nop 4
    """)
    FIN = GFA
    labels = [a.label("G2_red") for _ in range(4)]
    done = a.label("G2_reddone")
    for f in range(1, 4):
        a(f"s_cmp_eq_u32 s33, {f}\ns_cbranch_scc1 {labels[f]}")
    for f in range(4):
        a(f"{labels[f]}:")
        for d in range(1, 4):
            Tt = (f + d) & 3
            for q in range(4):
                a(f"ds_write_b128 v13, {vr(GACC+16*Tt+4*q,4)} offset:{(d-1)*4096 + q*1024}")
        for i in range(0, 16, 2):
            a(f"v_mov_b64 {vr(FIN+i,2)}, {vr(GACC+16*f+i,2)}")
        if f < 3:
            a(f"s_branch {done}")
    a(f"{done}:")
    lds_arrive(a, 20, 21, SY_F)
    a("s_add_u32 s50, s50, 4")
    for d in range(1, 4):
        a(f"s_sub_u32 s6, s33, {d}\ns_and_b32 s6, s6, 3\ns_lshl_b32 s6, s6, 14\nv_add_u32 v{13+d}, s6, v8")
    lds_wait_ge(a, 20, SY_F, 22, 6, "s50")
    for d in range(1, 4):
        for q in range(4):
            a(f"ds_read_b128 {vr(GACC+16*(d-1)+4*q,4)}, v{13+d} offset:{(d-1)*4096 + q*1024}")
    for d in range(1, 4):
        a(f"s_waitcnt lgkmcnt({4*(3-d)})")
        for i in range(16):
            a(f"v_add_f32 v{FIN+i}, v{FIN+i}, v{GACC+16*(d-1)+i}")
    for i in range(16):
        a(f"v_mul_f32 v{FIN+i}, v{FIN+i}, v12")
    for q in range(4):
        a(f"ds_write_b128 v13, {vr(FIN+4*q,4)} offset:{3*4096 + q*1024}")
    a("s_setprio 0")
    ts_markF(a, 7)

def gen_tail(a):
    ACC, OB, WF = 24, 56, 88
    a(f"""
    TAIL:
    v_lshlrev_b32 v4, 4, v1
    s_and_b32 s32, s3, 1
    s_lshr_b32 s33, s3, 1
    s_lshl_b32 s6, s4, 1
    s_add_u32 s34, s6, s32
    s_lshl_b32 s35, s34, 15
    s_lshl_b32 s6, s33, 13
    s_add_u32 s36, s35, s6
    s_add_u32 s37, s36, 4096
    v_bfe_u32 v2, v1, 2, 2
    v_lshrrev_b32 v3, 5, v1
    v_lshl_add_u32 v3, v3, 2, v2
    v_lshlrev_b32 v3, 7, v3
    v_bfe_u32 v2, v1, 3, 1
    v_lshl_add_u32 v3, v2, 6, v3
    v_bfe_u32 v2, v1, 4, 1
    v_lshl_add_u32 v3, v2, 5, v3
    v_and_b32 v2, 3, v1
    v_lshl_add_u32 v3, v2, 3, v3
    s_lshl_b32 s6, s33, 14
    s_add_u32 s6, s6, {WO_L}
    v_add_u32 v5, s6, v3
    v_xor_b32 v6, 64, v5
    """)
    wsrd(a, 20, OF, OF_SZ)
    srd(a, 24, P_OUT, P_OUT+1, 2048*1024)
    a(f"""
    v_and_b32 v13, 31, v1
    v_lshlrev_b32 v13, 2, v13
    s_lshl_b32 s6, s32, 7
    s_add_u32 s6, s6, {G_L}
    v_add_u32 v13, s6, v13
    s_waitcnt vmcnt(0) lgkmcnt(0)
    """)
    ts_markT(a, 0)
    a("s_barrier")
    ts_markT(a, 1)
    vm = Counter(a, "vmcnt", 63); lg = Counter(a, "lgkmcnt", 15)
    for h in range(8):
        a(f"buffer_load_dwordx4 {vr(OB+4*h,4)}, v4, s[20:23], s{36 + h//4} offen offset:{(h%4)*1024} {SC}"); vm.issue(h)
    def rdw(h):
        F = WF + 8*h
        for p in range(2):
            a(f"ds_read_b64_tr_b16 {vr(F+4*p,2)}, v{5+p} offset:{2048*h}"); lg.issue(h)
            a(f"ds_read_b64_tr_b16 {vr(F+4*p+2,2)}, v{5+p} offset:{2048*h+1024}"); lg.issue(h)
    for h in range(3):
        rdw(h)
    a(f"""
    s_and_b32 s6, s3, 3
    s_lshl_b32 s6, s6, 14
    s_lshr_b32 s7, s3, 2
    s_mul_i32 s7, s7, 6144
    s_add_u32 s6, s6, s7
    v_add_u32 v7, s6, v4
    """)
    for d in range(1, 4):
        a(f"""
        s_sub_u32 s6, s33, {d}
        s_and_b32 s6, s6, 3
        s_lshl_b32 s6, s6, 1
        s_add_u32 s6, s6, s32
        s_lshr_b32 s7, s6, 2
        s_mul_i32 s7, s7, 6144
        s_and_b32 s6, s6, 3
        s_lshl_b32 s6, s6, 14
        s_add_u32 s6, s6, s7
        v_add_u32 v{7+d}, s6, v4
        """)
    a(f"""
    s_lshr_b32 s6, s33, 1
    s_lshl_b32 s7, s6, 1
    s_add_u32 s7, s7, s32
    s_lshl_b32 s7, s7, 14
    s_and_b32 s38, s33, 1
    s_lshl_b32 s39, s38, 11
    s_add_u32 s7, s7, s39
    s_add_u32 s7, s7, {3*4096}
    v_add_u32 v11, s7, v4
    v_and_b32 v2, 31, v1
    v_lshrrev_b32 v3, 5, v1
    v_lshlrev_b32 v3, 4, v3
    v_lshl_add_u32 v12, v2, 10, v3
    s_lshl_b32 s6, s6, 6
    s_lshl_b32 s38, s38, 5
    s_add_u32 s6, s6, s38
    s_lshl_b32 s7, s5, 7
    s_add_u32 s6, s6, s7
    s_add_u32 s40, s6, s35
    """)
    for h in range(8):
        lg.wait(h)
        if h + 3 < 8:
            rdw(h + 3)
        vm.wait(h)
        if h == 0: ts_markT(a, 2)
        if h == 7: ts_markT(a, 3)
        for p in range(2):
            cin = "0" if h == 0 else vr(ACC+16*p, 16)
            a(f"v_mfma_f32_32x32x16_bf16 {vr(ACC+16*p,16)}, {vr(WF+8*h+4*p,4)}, {vr(OB+4*h,4)}, {cin}")
    FIN = OB
    BT = FIN + 8
    a(f"ds_read_b128 {vr(BT,4)}, v11\nds_read_b128 {vr(BT+4,4)}, v11 offset:1024\nds_read_b32 v13, v13\ns_nop 8")
    labels = [a.label("T_red") for _ in range(4)]
    done = a.label("T_reddone")
    for q in range(1, 4):
        a(f"s_cmp_eq_u32 s33, {q}\ns_cbranch_scc1 {labels[q]}")
    for q in range(4):
        a(f"{labels[q]}:")
        for d in range(1, 4):
            piece = (q + d) & 3
            for k in range(2):
                a(f"ds_write_b128 v7, {vr(ACC+8*piece+4*k,4)} offset:{(d-1)*2048 + k*1024}")
        for i in range(0, 8, 2):
            a(f"v_mov_b64 {vr(FIN+i,2)}, {vr(ACC+8*q+i,2)}")
        if q < 3:
            a(f"s_branch {done}")
    a(f"{done}:\ns_waitcnt lgkmcnt(0)")
    ts_markT(a, 4)
    a("s_barrier")
    ts_markT(a, 5)
    for d in range(1, 4):
        for k in range(2):
            a(f"ds_read_b128 {vr(WF+8*(d-1)+4*k,4)}, v{7+d} offset:{(d-1)*2048 + k*1024}")
    for d in range(1, 4):
        a(f"s_waitcnt lgkmcnt({2*(3-d)})")
        for i in range(8):
            a(f"v_add_f32 v{FIN+i}, v{FIN+i}, v{WF+8*(d-1)+i}")
    for i in range(8):
        a(f"v_fma_f32 v{FIN+i}, v{FIN+i}, v13, v{BT+i}")
    P = ACC
    for i in range(4):
        a(f"v_cvt_pk_bf16_f32 v{P+i}, v{FIN+2*i}, v{FIN+2*i+1}")
    a(f"""
    s_nop 1
    v_permlane32_swap_b32 v{P}, v{P+2}
    v_permlane32_swap_b32 v{P+1}, v{P+3}
    s_nop 1
    buffer_store_dwordx4 {vr(P,4)}, v12, s[24:27], s40 offen
    """)
    ts_markT(a, 6)
    ts_end(a)

def gen_mega(name):
    a = Asm()
    a(f".p2align 8\n.type {name},@function\n{name}:")
    a(f"""
    s_load_dwordx16 s[56:71], s[0:1], 0
    s_load_dwordx8 s[72:79], s[0:1], 64
    s_load_dwordx2 s[80:81], s[0:1], 96
    """)
    ts_begin(a)
    a(f"""
    s_cmp_ge_u32 s2, 256
    s_cbranch_scc1 M_end
    v_lshrrev_b32 v2, 6, v0
    v_and_b32 v1, 63, v0
    v_readfirstlane_b32 s3, v2
    s_and_b32 s4, s2, 7
    s_lshr_b32 s5, s2, 3
    s_and_b32 s5, s5, 3
    s_lshl_b32 s5, s5, 3
    s_add_u32 s4, s4, s5
    s_lshr_b32 s5, s2, 5
    s_mov_b32 s98, 0x800000
    s_mov_b32 s99, 0
    s_cmp_ge_u32 s3, 4
    s_cbranch_scc1 M_F
    """)
    gen_A(a)
    a("M_F:")
    n0 = len(a.L)
    gen_F(a)
    XP = os.environ.get("XP", "")
    if XP:
        st = [i for i, l in enumerate(a.L) if l.startswith("G1_loop:")][0]
        for i in range(st, len(a.L)):
            l = a.L[i]
            if "nodma" in XP and "buffer_load_dwordx4" in l:
                a.L[i] = "    s_nop 0"
            if "nomfma" in XP and "v_mfma" in l:
                a.L[i] = "    s_nop 0"
            if "nods" in XP and ("ds_read_b128" in l or "ds_read_b64_tr" in l):
                a.L[i] = "    s_nop 0"
    gen_tail(a)
    a("M_end:\ns_endpgm")
    return a.text(), kdesc(name, 224)

if __name__ == "__main__":
    import sys
    name = "gated_mix__grouped_kv_mqa__geglu_ffn__prompt_kernel"
    hdr = open("gated_mix__grouped_kv_mqa__geglu_ffn__prompt.s.ref").read().split("; Override launch")[0]
    t, d = gen_mega(name)
    out = hdr + f"; @launch grid=(256,1,1) block=(512,1,1) lds={LDS_TOTAL}\n"
    out += '.amdgcn_target "amdgcn-amd-amdhsa--gfx950"\n.text\n' + f".globl {name}\n" + t
    out += '.section .rodata,"a"\n.p2align 6\n' + d
    path = sys.argv[1] if len(sys.argv) > 1 else "gated_mix__grouped_kv_mqa__geglu_ffn__prompt.s"
    open(path, "w").write(out)
    print("wrote", path, len(out), "bytes")
```
